```python
import torch

def _softmax(x, axis=-1):
    return torch.softmax(x, dim=axis)
def _gelu(x):
    return torch.nn.functional.gelu(x, approximate="tanh")
def _silu(x):
    return torch.nn.functional.silu(x)
def _sigmoid(x):
    return torch.sigmoid(x)
def _layernorm(x, axis=-1, eps=1e-5):
    m = x.mean(dim=axis, keepdim=True)
    v = x.var(dim=axis, keepdim=True, unbiased=False)
    return (x - m) / torch.sqrt(v + eps)
def _scatter_add(tgt, idx, src, axis=0):
    return tgt.clone().index_add_(axis, idx, src)
def _segment_sum(src, seg, n):
    out = torch.zeros((n,) + src.shape[1:], dtype=src.dtype)
    return out.index_add_(0, seg, src)
def _pad(x, pw):
    flat = tuple(v for pair in reversed(pw) for v in pair)
    return torch.nn.functional.pad(x, flat)

kernel_name = 'recurrent_scan__sliding_block_cached__dense_activation_squared_relu__decode'

def setup_inputs():

    _w = (lambda a: (lambda t: t.to(torch.bfloat16) if t.is_floating_point() else t)(torch.as_tensor(a)))
    def _A_setup():
        B, Sq, D = 2, 1, 448
        Hq, Hkv, Sk, Dh = 16, 8, 8192, 256
        assert Hq % Hkv == 0, (Hq, Hkv)
        return {
            "x": _w((lambda *s: torch.randn(*s, dtype=torch.bfloat16) * 0.05)(B, Sq, D)),
            "k_cache": _w((lambda *s: torch.randn(*s, dtype=torch.bfloat16) * 0.8)(B, Hkv, Sk, Dh)),
            "v_cache": _w((lambda *s: torch.randn(*s, dtype=torch.bfloat16) * 0.2)(B, Hkv, Sk, Dh)),
            "wq": _w((lambda *s: torch.randn(*s, dtype=torch.bfloat16) * 0.8)(D, Hq * Dh) * (D ** -0.5)),
            "wo": _w((lambda *s: torch.randn(*s, dtype=torch.bfloat16) * 0.2)(Hq * Dh, D) * ((Hq * Dh) ** -0.5)),
        }
    _A_in = _A_setup()

    def _B_setup():
        B, S, D, F = 2, 1, 448, 1792
        return {
            "x": _w((lambda *s: torch.randn(*s, dtype=torch.bfloat16) * 0.05)(B, S, D)),
            "w1": _w((lambda *s: torch.randn(*s, dtype=torch.bfloat16) * 0.1)(D, F)),
            "b1": _w((lambda *s: torch.randn(*s, dtype=torch.bfloat16) * 0.4)(F)),
            "w2": _w((lambda *s: torch.randn(*s, dtype=torch.bfloat16) * 0.1)(F, D)),
            "b2": _w((lambda *s: torch.randn(*s, dtype=torch.bfloat16) * 6.4)(D)),
        }
    _B_in = _B_setup()

    return {
        "A_x": _A_in["x"],
        "A_k_cache": _A_in["k_cache"],
        "A_v_cache": _A_in["v_cache"],
        "A_wq": _A_in["wq"],
        "A_wo": _A_in["wo"],
        "B_x": _B_in["x"],
        "B_w1": _B_in["w1"],
        "B_b1": _B_in["b1"],
        "B_w2": _B_in["w2"],
        "B_b2": _B_in["b2"],
    }

def reference(A_x, A_k_cache, A_v_cache, A_wq, A_wo, B_x, B_w1, B_b1, B_w2, B_b2):
    def _A_ref(x, k_cache, v_cache, wq, wo):
        B, Sq, D = x.shape
        Hq, Dh = 16, 256
        Hkv, Sk = k_cache.shape[1], k_cache.shape[2]
        W = min(4096, max(256, Sk // 4))
        rep = Hq // Hkv
        q = (lambda x, *d: x.permute(*d))((x @ wq).reshape(B, Sq, Hq, Dh), 0, 2, 1, 3)
        k = (lambda x, n, axis: torch.repeat_interleave(x, n, dim=axis))(k_cache[:, :, Sk - W:, :], rep, axis=1)
        v = (lambda x, n, axis: torch.repeat_interleave(x, n, dim=axis))(v_cache[:, :, Sk - W:, :], rep, axis=1)
        scores = torch.einsum("bhqd,bhkd->bhqk", q, k) * (Dh ** -0.5)
        p = _softmax(scores, axis=-1)
        o = torch.einsum("bhqk,bhkd->bhqd", p, v)
        return (lambda x, *d: x.permute(*d))(o, 0, 2, 1, 3).reshape(B, Sq, Hq * Dh) @ wo

    def _B_ref(x, w1, b1, w2, b2):
        h = torch.einsum("bsd,df->bsf", x, w1) + b1
        zero = torch.zeros_like(h)
        r = torch.where(h > zero, h, zero)
        h = r * r
        out = torch.einsum("bsf,fd->bsd", h, w2) + b2
        return out

    x = A_x
    xn = _layernorm(x, axis=-1)
    s = _A_ref(xn, A_k_cache, A_v_cache, A_wq, A_wo)
    g = _silu(_B_ref(xn, B_w1, B_b1, B_w2, B_b2))
    return x + s * g
```

```python
NAME = "recurrent_scan__sliding_block_cached__dense_activation_squared_relu__decode"
STAMP_OFF = 0x8000000

class Asm:
    def __init__(self):
        self.l = []
        self.uid = 0
    def __call__(self, s):
        for line in s.strip("\n").split("\n"):
            self.l.append("    " + line.strip() if not line.strip().endswith(":") else line.strip())
    def label(self, base="L"):
        self.uid += 1
        return f"{base}_{self.uid}"
    def text(self):
        return "\n".join(self.l) + "\n"

def header(grid, block, lds):
    return f"""; @launch grid=({grid},1,1) block=({block},1,1) lds={lds}
.amdgcn_target "amdgcn-amd-amdhsa--gfx950"
.text
.globl {NAME}_kernel
.p2align 8
.type {NAME}_kernel,@function
{NAME}_kernel:
"""

def footer(vgpr, sgpr=102, accum=None):
    if accum is None:
        accum = min(256, (vgpr + 3) // 4 * 4)
    return f""".section .rodata,"a"
.p2align 6
.amdhsa_kernel {NAME}_kernel
  .amdhsa_next_free_vgpr {vgpr}
  .amdhsa_next_free_sgpr {sgpr}
  .amdhsa_accum_offset {accum}
  .amdhsa_group_segment_fixed_size 0
  .amdhsa_kernarg_size 104
  .amdhsa_user_sgpr_count 2
  .amdhsa_user_sgpr_kernarg_segment_ptr 1
  .amdhsa_system_sgpr_workgroup_id_x 1
.end_amdhsa_kernel
"""
```

```python
import sys, json
from asmlib import *
import hazard

WS_Q, WS_ST, WS_O, WS_S, WS_F = 0x1000, 0x41000, 0x44000, 0x144000, 0x224000
L_K, L_V, L_WQ = 0, 65536, 131072
L_XN = L_WQ + 14336
L_Q = L_XN + 1792
L_P = L_Q + 1024
L_MX = L_P + 512
L_LS = L_MX + 32
L_TAG = L_LS + 32
L_END = L_TAG + 32
L_W2 = 28672
LDS_BYTES = 149504
RSTR = 928
TAG_MUL, TAG_INC = 0x9E3779B1, 0x7F4A7C15
LOG2E = 1.4426950408889634
import struct
def f2u(x): return struct.unpack("<I", struct.pack("<f", x))[0]

def gen(stamps=False, depth=7, vthr=8, spin=100000, pref=True, nt="nt"):
    a = Asm()
    NT = " " + nt if nt else ""
    nst = [0]
    def stamp(i):
        r = 64 + 2 * i if i < 10 else {10: 94, 11: 100}[i]
        if stamps: a(f"s_memrealtime s[{r}:{r+1}]")
    def srd(r, lo, size):
        a(f"s_mov_b32 s{r}, s{lo}\ns_mov_b32 s{r+1}, s{lo+1}\ns_mov_b32 s{r+2}, {size}\ns_mov_b32 s{r+3}, 0x20000")
    def allred_row(op, regs, steps=(8, 4, 2, 1)):
        for st in steps:
            for r in regs:
                a(f"v_{op}_f32_dpp v{r}, v{r}, v{r} row_ror:{st} row_mask:0xf bank_mask:0xf")
    def allred_x(op, regs, tmps, kinds=(16, 32)):
        for k in kinds:
            for r, t in zip(regs, tmps): a(f"v_mov_b32 v{t}, v{r}")
            for r, t in zip(regs, tmps): a(f"v_permlane{k}_swap_b32 v{r}, v{t}")
            for r, t in zip(regs, tmps): a(f"v_{op}_f32 v{r}, v{r}, v{t}")
    def bfround(pairs, tmp):
        for i, (lo, hi) in enumerate(pairs): a(f"v_cvt_pk_bf16_f32 v{tmp+i}, v{lo}, v{hi}")
        for i, (lo, hi) in enumerate(pairs):
            a(f"v_lshlrev_b32 v{lo}, 16, v{tmp+i}")
            a(f"v_and_b32 v{hi}, 0xffff0000, v{tmp+i}")
    def check_tags(regs, ok, again, cnt):
        for r in regs: a(f"v_cmpx_eq_u32 vcc, v4, v{r}")
        a(f"""
        s_cmp_eq_u64 exec, -1
        s_mov_b64 exec, -1
        s_cbranch_scc1 {ok}
        s_sub_u32 s{cnt}, s{cnt}, 1
        s_cmp_gt_i32 s{cnt}, 0
        s_cbranch_scc1 {again}
        """)

    a(f"""
    s_cmp_ge_u32 s2, 256
    s_cbranch_scc1 L_end
    """)
    stamp(0)
    a(f"""
    s_load_dwordx16 s[16:31], s[0:1], 0
    s_load_dwordx8 s[32:39], s[0:1], 64
    s_load_dwordx2 s[40:41], s[0:1], 96
    v_lshrrev_b32 v2, 6, v0
    v_and_b32 v1, 63, v0
    v_readfirstlane_b32 s3, v2
    s_and_b32 s4, s2, 7
    s_lshr_b32 s5, s2, 3
    s_lshr_b32 s6, s5, 4
    s_and_b32 s7, s5, 15
    v_lshrrev_b32 v2, 4, v1
    v_and_b32 v3, 15, v1
    s_mov_b32 s42, {spin}
    s_cmp_eq_u32 s3, 0
    s_cbranch_scc1 L_aux
    """)
    a(f"""
    s_sub_u32 s8, s3, 1
    v_lshrrev_b32 v8, 5, v1
    s_lshl_b32 s9, s8, 1
    v_add_u32 v9, s9, v8
    v_and_b32 v10, 31, v1
    v_xor_b32 v11, v10, v9
    v_lshlrev_b32 v8, 9, v8
    v_lshl_add_u32 v5, v11, 4, v8
    v_xor_b32 v6, 0x80, v5
    v_lshlrev_b32 v9, 1, v9
    v_xor_b32 v11, v10, v9
    v_lshl_add_u32 v7, v11, 4, v8
    s_lshl_b32 s10, s6, 25
    s_lshl_b32 s11, s4, 22
    s_add_u32 s10, s10, s11
    s_lshl_b32 s11, s7, 16
    s_add_u32 s10, s10, s11
    s_lshl_b32 s12, s8, 10
    s_add_u32 s10, s10, s12
    s_add_u32 s10, s10, {6144*512}
    s_lshl_b32 s11, s7, 12
    s_waitcnt lgkmcnt(0)
    """)
    srd(44, 18, 0x4000000); srd(48, 20, 0x4000000); srd(52, 40, 0x10000000)
    a(f"""
    s_mov_b32 s14, 8
    s_barrier
    L_kloop:
    """)
    def dma_step(v, s):
        a(f"""
        s_add_u32 s13, s10, s11
        s_mov_b32 m0, s12
        s_add_u32 s11, s11, 4096
        buffer_load_dwordx4 v{v}, s[{s}:{s+3}], s13 offen{NT} lds
        s_and_b32 s11, s11, 0xffff
        s_add_u32 s12, s12, 4096
        """)
    dma_step(5, 44)
    if depth: a(f"s_waitcnt vmcnt({depth-1})")
    dma_step(6, 44)
    if depth: a(f"s_waitcnt vmcnt({depth-1})")
    a("""
    s_sub_u32 s14, s14, 1
    s_cmp_lg_u32 s14, 0
    s_cbranch_scc1 L_kloop
    """)
    stamp(1)
    if vthr and depth:
        a(f"s_mov_b32 s14, {vthr}\nL_vloop1:")
        dma_step(7, 48)
        a(f"""
        s_waitcnt vmcnt({depth-1})
        s_sub_u32 s14, s14, 1
        s_cmp_lg_u32 s14, 0
        s_cbranch_scc1 L_vloop1
        """)
    rest = 16 - (vthr if depth else 0)
    if rest:
        a(f"s_mov_b32 s14, {rest}\nL_vloop2:")
        dma_step(7, 48)
        a("""
        s_sub_u32 s14, s14, 1
        s_cmp_lg_u32 s14, 0
        s_cbranch_scc1 L_vloop2
        """)
    stamp(2)
    a("s_branch L_att")

    a(f"""
    L_aux:
    v_lshrrev_b32 v8, 3, v1
    v_lshrrev_b32 v9, 4, v1
    v_and_b32 v9, 3, v9
    v_lshlrev_b32 v9, 1, v9
    v_and_b32 v10, 7, v1
    v_xor_b32 v10, v10, v9
    v_lshlrev_b32 v8, 13, v8
    v_lshl_add_u32 v5, v10, 4, v8
    v_lshlrev_b32 v6, 4, v1
    s_lshr_b32 s8, s5, 3
    s_and_b32 s9, s5, 7
    s_mul_i32 s10, s8, {112*8192}
    s_lshl_b32 s11, s4, 10
    s_add_u32 s10, s10, s11
    s_lshl_b32 s11, s9, 7
    s_add_u32 s10, s10, s11
    s_mov_b32 s12, {L_WQ}
    s_mov_b32 s14, 14
    """)
    for r in range(8, 16): a(f"v_mov_b32 v{r}, 0")
    a("s_waitcnt lgkmcnt(0)")
    srd(44, 22, 448*8192); srd(52, 40, 0x10000000)
    a(f"""
    s_mov_b32 exec_hi, 0x00ffffff
    global_load_dwordx4 v[8:11], v6, s[16:17]
    global_load_dwordx4 v[12:15], v6, s[16:17] offset:896
    s_mov_b32 exec_hi, -1
    buffer_load_dword v4, off, s[52:55], 0 sc1
    L_wqloop:
    s_mov_b32 m0, s12
    s_add_u32 s12, s12, 1024
    buffer_load_dwordx4 v5, s[44:47], s10 offen{NT} lds
    s_add_u32 s10, s10, {8*8192}
    s_sub_u32 s14, s14, 1
    s_cmp_lg_u32 s14, 0
    s_cbranch_scc1 L_wqloop
    s_barrier
    """)
    npre = 0
    if pref:
        a(f"""
        s_getpc_b64 s[14:15]
        L_pc:
        s_sub_u32 s14, s14, L_pc-{NAME}_kernel
        s_subb_u32 s15, s15, 0
        s_lshl_b32 s13, s5, 9
        v_lshl_add_u32 v7, v1, 3, s13
        v_min_u32 v7, L_codeend-{NAME}_kernel-8, v7
        global_load_dwordx2 v[120:121], v7, s[14:15]
        """)
        npre = 1
    stamp(1)
    a(f"s_waitcnt vmcnt({14+npre})")
    for i in range(8):
        a(f"v_lshlrev_b32 v{20+2*i}, 16, v{8+i}")
        a(f"v_and_b32 v{21+2*i}, 0xffff0000, v{8+i}")
    a("""
    v_add_f32 v36, v20, v21
    v_add_f32 v37, v28, v29
    """)
    for i in range(2, 8):
        a(f"v_add_f32 v36, v36, v{20+i}")
        a(f"v_add_f32 v37, v37, v{28+i}")
    allred_row("add", [36, 37]); allred_x("add", [36, 37], [38, 39])
    inv = f2u(1.0 / 448)
    a(f"""
    v_mul_f32 v36, {inv:#x}, v36
    v_mul_f32 v37, {inv:#x}, v37
    v_mov_b32 v40, 0
    v_mov_b32 v41, 0
    s_mov_b32 exec_hi, 0x00ffffff
    """)
    for i in range(8):
        a(f"v_sub_f32 v42, v{20+i}, v36")
        a(f"v_sub_f32 v43, v{28+i}, v37")
        a(f"v_fmac_f32 v40, v42, v42")
        a(f"v_fmac_f32 v41, v43, v43")
    a("s_mov_b32 exec_hi, -1")
    allred_row("add", [40, 41]); allred_x("add", [40, 41], [38, 39])
    a(f"""
    v_mul_f32 v40, {inv:#x}, v40
    v_mul_f32 v41, {inv:#x}, v41
    """)
    bfround([(40, 41), (36, 37)], 38)
    eps = f2u(1e-5)
    a(f"""
    v_add_f32 v40, {eps:#x}, v40
    v_add_f32 v41, {eps:#x}, v41
    """)
    bfround([(40, 41)], 38)
    a("""
    v_sqrt_f32 v40, v40
    v_sqrt_f32 v41, v41
    """)
    bfround([(40, 41)], 38)
    a("""
    v_rcp_f32 v40, v40
    v_rcp_f32 v41, v41
    """)
    for i in range(8):
        a(f"v_sub_f32 v{20+i}, v{20+i}, v36")
        a(f"v_sub_f32 v{28+i}, v{28+i}, v37")
    bfround([(20+2*i, 21+2*i) for i in range(8)], 44)
    for i in range(8):
        a(f"v_mul_f32 v{20+i}, v{20+i}, v40")
        a(f"v_mul_f32 v{28+i}, v{28+i}, v41")
    for i in range(8):
        a(f"v_cvt_pk_bf16_f32 v{44+i}, v{20+2*i}, v{21+2*i}")
    a(f"""
    v_add_u32 v7, {L_XN}, v6
    s_mov_b32 exec_hi, 0x00ffffff
    ds_write_b128 v7, v[44:47]
    ds_write_b128 v7, v[48:51] offset:896
    s_mov_b32 exec_hi, -1
    ; tag
    s_mov_b32 s13, {TAG_MUL:#x}
    v_mul_lo_u32 v4, v4, s13
    v_add_u32 v4, {TAG_INC:#x}, v4
    v_and_b32 v7, 7, v1
    v_lshlrev_b32 v7, 2, v7
    v_add_u32 v7, {L_TAG}, v7
    ds_write_b32 v7, v4
    v_and_b32 v8, 1, v3
    v_mul_u32_u24 v9, 896, v8
    s_mul_i32 s13, s8, 224
    s_add_u32 s13, s13, {L_XN}
    v_lshl_add_u32 v9, v2, 3, v9
    v_add_u32 v9, s13, v9
    v_lshrrev_b32 v10, 2, v3
    v_lshl_add_u32 v11, v2, 2, v10
    v_lshrrev_b32 v12, 1, v11
    v_and_b32 v12, 3, v12
    v_lshlrev_b32 v12, 5, v12
    v_and_b32 v13, 3, v3
    v_lshlrev_b32 v13, 3, v13
    v_xor_b32 v12, v12, v13
    v_lshl_add_u32 v12, v11, 7, v12
    v_add_u32 v12, {L_WQ}, v12
    v_xor_b32 v13, 32, v12
    v_xor_b32 v14, 64, v12
    v_xor_b32 v15, 96, v12
    s_waitcnt lgkmcnt(0)
    """)
    for s in range(3): a(f"ds_read2_b64 v[{20+4*s}:{23+4*s}], v9 offset0:{8*s} offset1:{8*s+4}")
    a("ds_read_b64 v[32:33], v9 offset:192")
    stamp(2)
    a(f"s_waitcnt vmcnt({npre})")
    stamp(3)
    for s in range(4):
        for t in range(4):
            b = 40 + 14 * t + 4 * s
            a(f"ds_read_b64_tr_b16 v[{b}:{b+1}], v{12+t} offset:{s*4096}")
            if s < 3: a(f"ds_read_b64_tr_b16 v[{b+2}:{b+3}], v{12+t} offset:{s*4096+2048}")
    for s in range(4):
        rem = [20, 12, 4, 0][s]
        a(f"s_waitcnt lgkmcnt({min(rem,15)})")
        for t in range(4):
            b = 40 + 14 * t + 4 * s
            c = f"v[{96+4*t}:{99+4*t}]" if s else "0"
            if s < 3: a(f"v_mfma_f32_16x16x32_bf16 v[{96+4*t}:{99+4*t}], v[{20+4*s}:{23+4*s}], v[{b}:{b+3}], {c}")
            else: a(f"v_mfma_f32_16x16x16_bf16 v[{96+4*t}:{99+4*t}], v[32:33], v[{b}:{b+1}], {c}")
    def lane_masks():
        a("""
        s_mov_b32 s56, 0xffff0000
        s_mov_b32 s57, 0
        s_mov_b32 s58, 0
        s_mov_b32 s59, 0x0000ffff
        s_mov_b32 s60, 0
        s_mov_b32 s61, 0xffff0000
        s_mov_b32 s62, 0xaaaaaaaa
        s_mov_b32 s63, 0xaaaaaaaa
        """)
    lane_masks()
    a(f"""
    v_lshlrev_b32 v16, 14, v8
    v_and_b32 v17, 14, v3
    v_lshl_add_u32 v17, v2, 4, v17
    v_lshl_add_u32 v16, v17, 3, v16
    s_lshl_b32 s10, s4, 15
    s_lshl_b32 s11, s8, 12
    s_add_u32 s10, s10, s11
    s_lshl_b32 s11, s9, 9
    s_add_u32 s10, s10, s11
    s_add_u32 s10, s10, {WS_Q}
    v_mov_b32 v21, v4
    v_mov_b32 v23, v4
    """)
    def seltile(d0, d1, base):
        for d, i in ((d0, 0), (d1, 1)):
            a(f"v_cndmask_b32 v{d}, v{base+i}, v{base+4+i}, s[56:57]")
        for d, i in ((d0, 0), (d1, 1)):
            a(f"v_cndmask_b32 v{d}, v{d}, v{base+8+i}, s[58:59]")
        for d, i in ((d0, 0), (d1, 1)):
            a(f"v_cndmask_b32 v{d}, v{d}, v{base+12+i}, s[60:61]")
    seltile(24, 25, 96)
    def pairup(x0, x1, d0, d2, t0, t1):
        a(f"""
        v_mov_b32_dpp v{t0}, v{x0} quad_perm:[1,0,3,2] row_mask:0xf bank_mask:0xf
        v_mov_b32_dpp v{t1}, v{x1} quad_perm:[1,0,3,2] row_mask:0xf bank_mask:0xf
        v_cndmask_b32 v{d0}, v{x0}, v{t1}, s[62:63]
        v_cndmask_b32 v{d2}, v{t0}, v{x1}, s[62:63]
        """)
    pairup(24, 25, 20, 22, 26, 27)
    a("buffer_store_dwordx4 v[20:23], v16, s[52:55], s10 offen sc1")
    stamp(4)
    a(f"""
    s_lshl_b32 s10, s4, 1
    s_add_u32 s10, s10, s6
    s_lshl_b32 s10, s10, 14
    s_add_u32 s10, s10, {WS_Q}
    s_add_u32 s11, s10, 4096
    s_add_u32 s12, s10, 8192
    s_add_u32 s13, s10, 12288
    v_and_b32 v16, 31, v1
    v_lshlrev_b32 v16, 9, v16
    L_qpoll1:
    buffer_load_dwordx2 v[18:19], v16, s[52:55], s10 offen offset:504 sc1
    s_waitcnt vmcnt(0)
    """)
    check_tags([19], "L_qpoll2", "L_qpoll1", 42)
    a("L_qpoll2:")
    stamp(5)
    a("L_qpoll3:")
    for rg in range(4):
        for u in range(4):
            b = 32 + 16 * rg + 4 * u
            a(f"buffer_load_dwordx4 v[{b}:{b+3}], v6, s[52:55], s{10+rg} offen offset:{u*1024} sc1")
    a("s_waitcnt vmcnt(0)")
    check_tags([32 + 2 * i + 1 for i in range(32)], "L_qok", "L_qpoll3", 42)
    a("L_qok:")
    for rg in range(1, 4):
        for u in range(4):
            for e in (0, 2):
                a(f"v_add_f32 v{32+4*u+e}, v{32+4*u+e}, v{32+16*rg+4*u+e}")
    for u in range(4): a(f"v_cvt_pk_bf16_f32 v{20+u}, v{32+4*u}, v{34+4*u}")
    a(f"v_lshlrev_b32 v16, 2, v1\nv_add_u32 v16, {L_Q}, v16")
    for u in range(4): a(f"ds_write_b32 v16, v{20+u} offset:{256*u}")
    a("s_waitcnt lgkmcnt(0)")
    stamp(6)
    a("s_barrier")
    a("s_branch L_done")

    a(f"""
    L_att:
    s_lshl_b32 s13, s8, 5
    v_add_u32 v8, s13, v3
    v_xor_b32 v9, v2, v3
    v_lshlrev_b32 v9, 4, v9
    v_lshl_add_u32 v8, v8, 9, v9
    v_xor_b32 v9, 64, v8
    v_xor_b32 v10, 0x80, v8
    v_xor_b32 v11, 0xc0, v8
    v_and_b32 v13, 1, v3
    v_lshlrev_b32 v12, 9, v13
    v_lshl_add_u32 v12, v2, 4, v12
    v_add_u32 v12, {L_Q}, v12
    v_lshrrev_b32 v14, 2, v3
    v_lshl_add_u32 v14, v2, 2, v14
    v_and_b32 v15, 7, v14
    v_lshlrev_b32 v15, 5, v15
    v_and_b32 v16, 3, v3
    v_lshlrev_b32 v16, 3, v16
    s_lshl_b32 s13, s8, 7
    v_add_u32 v16, s13, v16
    v_xor_b32 v16, v16, v15
    v_lshl_add_u32 v16, v14, 9, v16
    v_add_u32 v16, {L_V}, v16
    v_xor_b32 v17, 32, v16
    v_xor_b32 v18, 64, v16
    v_xor_b32 v19, 96, v16
    v_lshlrev_b32 v20, 4, v13
    v_lshl_add_u32 v22, v2, 5, v20
    v_add_u32 v20, {L_MX}, v20
    s_lshl_b32 s13, s8, 2
    v_add_u32 v21, s13, v20
    v_add_u32 v22, {L_P}, v22
    s_lshl_b32 s13, s8, 7
    v_add_u32 v23, s13, v22
    """)
    lane_masks()
    a(f"""
    s_mul_i32 s89, s4, 7
    s_add_u32 s89, s89, s7
    s_min_u32 s90, s89, 55
    s_cmp_eq_u32 s6, 0
    s_cbranch_scc0 L_role_b1
    s_mov_b32 s96, s24
    s_mov_b32 s97, s25
    s_mov_b32 s98, {4096*896}
    s_lshl_b32 s84, s4, 9
    s_lshl_b32 s13, s7, 4
    s_add_u32 s84, s84, s13
    s_lshl_b32 s13, s8, 2
    s_add_u32 s84, s84, s13
    s_mul_i32 s84, s84, 896
    s_mov_b32 s85, {256*896}
    s_mov_b32 s86, 896
    s_mov_b32 s88, {RSTR}
    v_lshlrev_b32 v24, 4, v1
    s_branch L_role_set
    L_role_b1:
    s_mov_b32 s96, s28
    s_mov_b32 s97, s29
    s_cmp_lt_u32 s7, 7
    s_cselect_b32 s98, {448*3584}, 0
    s_mul_i32 s84, s8, {8*14*3584}
    s_lshl_b32 s13, s90, 6
    s_add_u32 s84, s84, s13
    s_mov_b32 s85, {14*3584}
    s_mov_b32 s86, {28*3584}
    s_mov_b32 s88, 896
    v_lshrrev_b32 v24, 2, v1
    v_mul_u32_u24 v24, 3584, v24
    v_and_b32 v25, 3, v1
    v_lshl_add_u32 v24, v25, 4, v24
    L_role_set:
    s_mov_b32 s99, 0x20000
    s_lshl_b32 s87, s88, 3
    s_mul_i32 s87, s87, s8
    s_lshl_b32 s13, s90, 6
    v_lshl_add_u32 v25, v2, 3, s13
    s_waitcnt vmcnt(16)
    """)
    stamp(3)
    a("s_barrier")
    stamp(4)
    pc = [0]
    def post(n):
        a("s_mov_b32 exec_hi, 0x00ffffff")
        for _ in range(n):
            i = pc[0]; pc[0] += 1
            if i & 1: a("s_add_u32 s13, s84, s85\ns_add_u32 s84, s84, s86")
            else: a("s_mov_b32 s13, s84")
            a(f"""
            s_mov_b32 m0, s87
            s_add_u32 s87, s87, s88
            buffer_load_dwordx4 v24, s[96:99], s13 offen{NT} lds
            """)
        a("s_mov_b32 exec_hi, -1")
    a(f"ds_read_b32 v4, v20 offset:{L_TAG-L_MX}")
    for s in range(8):
        a(f"ds_read_b128 v[{32+4*s}:{35+4*s}], v12 offset:{64*s}")
        a(f"ds_read_b128 v[{64+4*s}:{67+4*s}], v{8+(s&3)} offset:{(s>>2)*256}")
        a(f"ds_read_b128 v[{96+4*s}:{99+4*s}], v{8+(s&3)} offset:{(s>>2)*256+8192}")
    for s in range(8):
        a(f"s_waitcnt lgkmcnt({min(15, 21-3*s)})")
        cx = "v[128:131]" if s else "0"; cy = "v[132:135]" if s else "0"
        a(f"v_mfma_f32_16x16x32_bf16 v[128:131], v[{64+4*s}:{67+4*s}], v[{32+4*s}:{35+4*s}], {cx}")
        a(f"v_mfma_f32_16x16x32_bf16 v[132:135], v[{96+4*s}:{99+4*s}], v[{32+4*s}:{35+4*s}], {cy}")
    bfround([(128+2*i, 129+2*i) for i in range(4)], 32)
    a("""
    v_max3_f32 v36, v128, v129, v130
    v_max3_f32 v37, v131, v132, v133
    v_max3_f32 v36, v36, v134, v135
    v_max_f32 v36, v36, v37
    """)
    allred_x("max", [36], [37])
    c = f2u(LOG2E / 16)
    a(f"""
    s_mov_b64 exec, 3
    ds_write_b32 v21, v36
    s_mov_b64 exec, -1
    s_waitcnt lgkmcnt(0)
    s_barrier
    ds_read_b128 v[36:39], v20
    """)
    post(2)
    a(f"""
    global_load_dwordx2 v[28:29], v25, s[30:31]
    global_load_dwordx2 v[30:31], v25, s[30:31] offset:32
    s_mov_b32 s13, {c:#x}
    s_waitcnt lgkmcnt(0)
    v_max3_f32 v36, v36, v37, v38
    v_max_f32 v36, v36, v39
    v_mul_f32 v26, s13, v36
    """)
    for i in range(8): a(f"v_fma_f32 v{128+i}, v{128+i}, s13, -v26")
    for i in range(8): a(f"v_exp_f32 v{128+i}, v{128+i}")
    for i in range(4): a(f"v_cvt_pk_bf16_f32 v{32+i}, v{128+2*i}, v{129+2*i}")
    a("""
    v_add_f32 v36, v128, v129
    v_add_f32 v37, v130, v131
    v_add_f32 v38, v132, v133
    v_add_f32 v39, v134, v135
    v_add_f32 v36, v36, v37
    v_add_f32 v38, v38, v39
    v_add_f32 v36, v36, v38
    s_mov_b32 exec_lo, 0x00030003
    s_mov_b32 exec_hi, 0x00030003
    ds_write_b128 v23, v[32:35]
    s_mov_b64 exec, -1
    """)
    allred_x("add", [36], [37])
    a(f"""
    s_mov_b64 exec, 3
    ds_write_b32 v21, v36 offset:32
    s_mov_b64 exec, -1
    s_lshl_b32 s91, s4, 1
    s_add_u32 s91, s91, s6
    s_lshl_b32 s91, s91, 4
    s_add_u32 s91, s91, s7
    s_lshl_b32 s91, s91, 5
    s_add_u32 s91, s91, {WS_ST}
    v_lshlrev_b32 v27, 4, v13
    ; o: WS_O + (h*16 + 4a + g)*8192 + b*4096 + j*256 + n*16
    s_lshl_b32 s92, s4, 4
    s_lshl_b32 s13, s8, 2
    s_add_u32 s92, s92, s13
    s_lshl_b32 s92, s92, 13
    s_lshl_b32 s13, s6, 12
    s_add_u32 s92, s92, s13
    s_lshl_b32 s13, s7, 8
    s_add_u32 s92, s92, s13
    s_add_u32 s92, s92, {WS_O}
    v_lshlrev_b32 v15, 13, v2
    v_lshl_add_u32 v15, v3, 4, v15
    s_waitcnt vmcnt(16) lgkmcnt(0)
    """)
    stamp(5)
    a("s_barrier")
    for s in range(4): a(f"ds_read_b128 v[{32+4*s}:{35+4*s}], v22 offset:{128*s}")
    a("ds_read_b128 v[48:51], v20 offset:32")
    def stage(s):
        for t in range(4):
            a(f"ds_read_b64_tr_b16 v[{64+4*t}:{65+4*t}], v{16+t} offset:{s*16384}")
            a(f"ds_read_b64_tr_b16 v[{66+4*t}:{67+4*t}], v{16+t} offset:{s*16384+8192}")
    def stage_mm(s):
        for t in range(4):
            a(f"s_waitcnt lgkmcnt({6-2*t})")
            cc = f"v[{128+4*t}:{131+4*t}]" if s else "0"
            a(f"v_mfma_f32_16x16x32_bf16 v[{128+4*t}:{131+4*t}], v[{32+4*s}:{35+4*s}], v[{64+4*t}:{67+4*t}], {cc}")
    stage(0)
    a(f"""
    s_waitcnt lgkmcnt(8)
    v_add_f32 v48, v48, v49
    v_add_f32 v50, v50, v51
    v_mov_b32 v52, v26
    v_mov_b32 v53, v4
    v_add_f32 v54, v48, v50
    v_mov_b32 v55, v4
    s_and_b32 s13, s8, 1
    s_lshl_b32 exec_lo, 1, s13
    s_mov_b32 exec_hi, 0
    buffer_store_dwordx4 v[52:55], v27, s[52:55], s91 offen sc1
    s_mov_b64 exec, -1
    """)
    post(2)
    stage_mm(0)
    for s, w in ((1, 15), (2, 13), (3, 11)):
        a(f"s_waitcnt vmcnt({w})")
        if s == 3: stamp(6)
        a("s_barrier")
        stage(s)
        if s < 3: post(2)
        else: a("v_mov_b32 v57, v4\nv_mov_b32 v59, v4")
        stage_mm(s)
    seltile(56, 58, 128)
    a("buffer_store_dwordx4 v[56:59], v15, s[52:55], s92 offen sc1")
    stamp(7)
    a(f"""
    s_cmp_eq_u32 s6, 0
    s_cbranch_scc0 L_b1roles
    """)
    a(f"""
    s_lshr_b32 s9, s8, 1
    s_lshl_b32 s10, s4, 4
    s_add_u32 s10, s10, s7
    s_lshl_b32 s11, s10, 13
    s_lshl_b32 s13, s9, 12
    s_add_u32 s11, s11, s13
    s_add_u32 s11, s11, {WS_O}
    v_lshlrev_b32 v8, 8, v3
    v_lshl_add_u32 v8, v2, 5, v8
    s_lshl_b32 s12, s4, 1
    s_add_u32 s12, s12, s9
    s_lshl_b32 s12, s12, 9
    s_add_u32 s12, s12, {WS_ST}
    v_lshrrev_b32 v9, 1, v2
    v_lshlrev_b32 v9, 4, v9
    v_lshl_add_u32 v9, v3, 5, v9
    """)
    def wo_gather():
        for i, off in enumerate((0, 16, 128, 144)):
            a(f"buffer_load_dwordx4 v[{32+4*i}:{35+4*i}], v8, s[52:55], s11 offen offset:{off} sc1")
        a("buffer_load_dwordx4 v[48:51], v9, s[52:55], s12 offen sc1")
    wo_gather()
    a(f"""
    v_mul_u32_u24 v10, {RSTR}, v14
    v_and_b32 v11, 3, v3
    v_lshl_add_u32 v10, v11, 3, v10
    s_and_b32 s13, s8, 1
    s_mul_i32 s14, s13, 448
    v_add_u32 v10, s14, v10
    s_mul_i32 s14, s9, 28
    s_mul_i32 s13, s13, 14
    s_add_u32 s14, s14, s13
    s_lshl_b32 s14, s14, 14
    s_lshl_b32 s13, s10, 7
    s_add_u32 s14, s14, s13
    s_add_u32 s14, s14, {WS_S}
    s_add_u32 s15, s14, {8*16384}
    v_lshl_add_u32 v11, v13, 2, v2
    v_lshlrev_b32 v11, 14, v11
    v_and_b32 v12, 14, v3
    v_lshl_add_u32 v11, v12, 3, v11
    """)
    for r in range(144, 160): a(f"v_mov_b32 v{r}, 0")
    a("s_waitcnt vmcnt(6)\ns_barrier")
    for t in range(14):
        a(f"ds_read_b64_tr_b16 v[{64+4*t}:{65+4*t}], v10 offset:{32*t}")
        a(f"ds_read_b64_tr_b16 v[{66+4*t}:{67+4*t}], v10 offset:{32*t+16*RSTR}")
    stamp(8)
    a("s_branch L_wo_chk\nL_wo_again:")
    wo_gather()
    a("L_wo_chk:\ns_waitcnt vmcnt(0)")
    check_tags([33, 35, 37, 39, 41, 43, 45, 47, 49, 51], "L_wo_ok", "L_wo_again", 42)
    a("L_wo_ok:")
    stamp(9)
    a("v_mov_b32 v52, v48")
    allred_row("max", [52])
    a("""
    v_sub_f32 v48, v48, v52
    v_exp_f32 v48, v48
    v_mul_f32 v50, v48, v50
    """)
    allred_row("add", [50])
    a("""
    v_rcp_f32 v50, v50
    v_mul_f32 v48, v48, v50
    v_mov_b32 v49, v48
    v_permlane32_swap_b32 v48, v49
    """)
    vals = [32, 34, 36, 38, 40, 42, 44, 46]
    for i, r in enumerate(vals): a(f"v_mul_f32 v{r}, v{r}, v{48 + (i & 1)}")
    allred_row("add", vals)
    def masked_cvt(dst, src):
        for m in range(4):
            mk = 0x000f000f << (4 * m)
            a(f"s_mov_b32 exec_lo, {mk:#x}\ns_mov_b32 exec_hi, {mk:#x}")
            for i in range(4): a(f"v_cvt_pk_bf16_f32 v{dst+4*m+i}, v{src[2*i]}, v{src[2*i+1]}")
        a("s_mov_b64 exec, -1")
    masked_cvt(144, vals)
    a("v_mov_b32 v33, v4\nv_mov_b32 v35, v4\nv_mov_b32 v37, v4\nv_mov_b32 v39, v4\ns_waitcnt lgkmcnt(0)")
    for m in range(4):
        for u in range(4):
            t = 4 * u + m
            if t >= 14: continue
            cc = f"v[{128+4*u}:{131+4*u}]" if m else "0"
            a(f"v_mfma_f32_16x16x32_bf16 v[{128+4*u}:{131+4*u}], v[{144+4*m}:{147+4*m}], v[{64+4*t}:{67+4*t}], {cc}")
    pairup(128, 132, 32, 34, 40, 41)
    a("buffer_store_dwordx4 v[32:35], v11, s[52:55], s14 offen sc1")
    pairup(136, 140, 36, 38, 42, 43)
    a("""
    s_mov_b32 exec_hi, 0x55555555
    buffer_store_dwordx4 v[36:39], v11, s[52:55], s15 offen sc1
    """)
    stamp(10)
    a("s_branch L_done")

    a(f"""
    L_b1roles:
    s_cmp_lt_u32 s7, 7
    s_cbranch_scc0 L_fin
    """)
    srd(44, 32, 1792*896)
    a(f"""
    s_lshl_b32 s10, s89, 5
    s_lshl_b32 s13, s8, 3
    s_add_u32 s10, s10, s13
    s_mul_i32 s10, s10, 896
    s_mul_i32 s12, s13, {RSTR}
    s_add_u32 s12, s12, {L_W2}
    v_lshlrev_b32 v8, 4, v1
    s_mov_b32 exec_hi, 0x00ffffff
    """)
    for i in range(8):
        a(f"""
        s_mov_b32 m0, s12
        s_add_u32 s12, s12, {RSTR}
        buffer_load_dwordx4 v8, s[44:47], s10 offen{NT} lds
        s_add_u32 s10, s10, 896
        """)
    a(f"""
    s_mov_b32 exec_hi, -1
    v_mul_u32_u24 v9, 896, v13
    v_lshl_add_u32 v9, v2, 3, v9
    v_add_u32 v9, {L_XN}, v9
    v_and_b32 v11, 3, v3
    v_lshlrev_b32 v11, 3, v11
    v_lshl_add_u32 v10, v14, 6, v11
    v_mul_u32_u24 v12, {RSTR}, v14
    v_add_u32 v12, v12, v11
    s_mul_i32 s13, s8, 224
    s_add_u32 s13, s13, {L_W2}
    v_add_u32 v12, s13, v12
    s_mul_i32 s14, s8, {7*7168}
    s_lshl_b32 s13, s89, 7
    s_add_u32 s14, s14, s13
    s_add_u32 s14, s14, {WS_F}
    s_add_u32 s15, s14, {4*7168}
    v_mul_u32_u24 v11, 28, v13
    v_add_u32 v11, v11, v2
    v_mul_u32_u24 v11, 7168, v11
    v_and_b32 v15, 14, v3
    v_lshl_add_u32 v11, v15, 3, v11
    """)
    for r in range(144, 160): a(f"v_mov_b32 v{r}, 0")
    a("s_waitcnt vmcnt(9)\ns_barrier")
    stamp(8)
    def h_reads(s):
        b = 32 + 12 * (s % 4)
        a(f"ds_read2_b64 v[{b}:{b+3}], v9 offset0:{8*s} offset1:{8*s+4}")
        for t in range(2):
            a(f"ds_read_b64_tr_b16 v[{b+4+4*t}:{b+5+4*t}], v10 offset:{s*2048+32*t}")
            a(f"ds_read_b64_tr_b16 v[{b+6+4*t}:{b+7+4*t}], v10 offset:{s*2048+32*t+1024}")
    for s in range(3): h_reads(s)
    for s in range(14):
        left = min(2, 13 - s)
        a(f"s_waitcnt lgkmcnt({5*left})")
        b = 32 + 12 * (s % 4)
        for t in range(2):
            cc = f"v[{128+4*t}:{131+4*t}]" if s else "0"
            a(f"v_mfma_f32_16x16x32_bf16 v[{128+4*t}:{131+4*t}], v[{b+4+4*t}:{b+7+4*t}], v[{b}:{b+3}], {cc}")
        if s + 3 < 14: h_reads(s + 3)
    for i in range(4):
        a(f"v_lshlrev_b32 v{80+2*i}, 16, v{28+i}")
        a(f"v_and_b32 v{81+2*i}, 0xffff0000, v{28+i}")
    hp = [(128+2*i, 129+2*i) for i in range(4)]
    bfround(hp, 32)
    for i in range(8): a(f"v_add_f32 v{128+i}, v{128+i}, v{80+i}")
    bfround(hp, 32)
    for i in range(8): a(f"v_max_f32 v{128+i}, 0, v{128+i}")
    for i in range(8): a(f"v_mul_f32 v{128+i}, v{128+i}, v{128+i}")
    masked_cvt(144, list(range(128, 136)))
    a("v_mov_b32 v33, v4\nv_mov_b32 v35, v4\nv_mov_b32 v37, v4\nv_mov_b32 v39, v4")
    stamp(9)
    a("s_waitcnt vmcnt(0)\ns_barrier")
    for t in range(7):
        a(f"ds_read_b64_tr_b16 v[{64+4*t}:{65+4*t}], v12 offset:{32*t}")
        a(f"ds_read_b64_tr_b16 v[{66+4*t}:{67+4*t}], v12 offset:{32*t+16*RSTR}")
    for t in range(7):
        u, m = t >> 2, t & 3
        a(f"s_waitcnt lgkmcnt({12-2*t})")
        cc = f"v[{136+4*u}:{139+4*u}]" if m else "0"
        a(f"v_mfma_f32_16x16x32_bf16 v[{136+4*u}:{139+4*u}], v[{144+4*m}:{147+4*m}], v[{64+4*t}:{67+4*t}], {cc}")
    pairup(136, 137, 32, 34, 40, 41)
    a("buffer_store_dwordx4 v[32:35], v11, s[52:55], s14 offen sc1")
    pairup(140, 141, 36, 38, 42, 43)
    a("""
    s_mov_b32 exec_hi, 0x0000ffff
    buffer_store_dwordx4 v[36:39], v11, s[52:55], s15 offen sc1
    """)
    stamp(10)
    a("s_branch L_done")

    a(f"""
    L_fin:
    s_cmp_lt_u32 s7, 14
    s_cbranch_scc0 L_done
    s_sub_u32 s9, s89, 7
    s_cmp_ge_u32 s9, 28
    s_cselect_b32 s10, 28, 0
    s_cselect_b32 s11, 896, 0
    s_sub_u32 s10, s9, s10
    s_lshl_b32 s12, s10, 5
    s_lshl_b32 s13, s8, 3
    s_add_u32 s12, s12, s13
    v_and_b32 v8, 1, v1
    v_lshl_add_u32 v9, v8, 2, s12
    v_add_u32 v10, s11, v9
    global_load_dword v16, v10, s[16:17]
    global_load_dword v17, v9, s[34:35]
    global_load_dword v18, v10, s[36:37]
    v_lshrrev_b32 v11, 1, v1
    v_lshlrev_b32 v11, 7, v11
    v_lshl_add_u32 v11, v8, 4, v11
    s_lshl_b32 s13, s8, 5
    v_add_u32 v11, s13, v11
    s_lshl_b32 s12, s9, 14
    s_add_u32 s12, s12, {WS_S}
    s_add_u32 s13, s12, 4096
    s_add_u32 s14, s12, 8192
    s_add_u32 s15, s12, 12288
    s_mul_i32 s84, s9, 7168
    s_add_u32 s84, s84, {WS_F}
    s_add_u32 s85, s84, 4096
    v_mov_b32 v52, 0
    v_mov_b32 v53, v4
    v_mov_b32 v54, 0
    v_mov_b32 v55, v4
    L_fin_again:
    buffer_load_dwordx4 v[48:51], v11, s[52:55], s84 offen sc1
    s_mov_b32 exec_hi, 0x0000ffff
    buffer_load_dwordx4 v[52:55], v11, s[52:55], s85 offen sc1
    s_mov_b32 exec_hi, -1
    """)
    for u in range(4): a(f"buffer_load_dwordx4 v[{32+4*u}:{35+4*u}], v11, s[52:55], s{12+u} offen sc1")
    a("s_waitcnt vmcnt(0)")
    check_tags([33 + 2 * i for i in range(12)], "L_fin_ok", "L_fin_again", 42)
    a("L_fin_ok:")
    stamp(9)
    a("""
    v_add_f32 v32, v32, v36
    v_add_f32 v34, v34, v38
    v_add_f32 v40, v40, v44
    v_add_f32 v42, v42, v46
    v_add_f32 v48, v48, v52
    v_add_f32 v50, v50, v54
    v_add_f32 v32, v32, v40
    v_add_f32 v34, v34, v42
    """)
    allred_row("add", [32, 34, 48, 50], steps=(8, 4, 2))
    allred_x("add", [32, 34, 48, 50], [33, 35, 49, 51])
    a("""
    v_lshlrev_b32 v20, 16, v16
    v_and_b32 v21, 0xffff0000, v16
    v_lshlrev_b32 v22, 16, v17
    v_and_b32 v23, 0xffff0000, v17
    """)
    bfround([(32, 34), (48, 50)], 36)
    a("v_add_f32 v48, v48, v22\nv_add_f32 v50, v50, v23")
    bfround([(48, 50)], 36)
    nl = f2u(-LOG2E)
    a(f"""
    v_mul_f32 v40, {nl:#x}, v48
    v_mul_f32 v41, {nl:#x}, v50
    v_exp_f32 v40, v40
    v_exp_f32 v41, v41
    v_add_f32 v40, 1.0, v40
    v_add_f32 v41, 1.0, v41
    v_rcp_f32 v40, v40
    v_rcp_f32 v41, v41
    v_mul_f32 v48, v48, v40
    v_mul_f32 v50, v50, v41
    """)
    bfround([(48, 50)], 36)
    a("v_mul_f32 v32, v32, v48\nv_mul_f32 v34, v34, v50")
    bfround([(32, 34)], 36)
    a("""
    v_add_f32 v32, v32, v20
    v_add_f32 v34, v34, v21
    v_cvt_pk_bf16_f32 v32, v32, v34
    s_mov_b64 exec, 3
    global_store_dword v10, v32, s[36:37]
    s_add_u32 s13, s9, s8
    s_cmp_eq_u32 s13, 0
    s_cbranch_scc0 L_fin_end
    s_mov_b64 exec, 1
    buffer_store_dword v4, off, s[52:55], 0
    L_fin_end:
    """)
    stamp(10)
    a("L_done:")
    if stamps:
        a(f"""
        s_memrealtime s[100:101]
        s_mov_b32 s84, s42
        s_getreg_b32 s85, hwreg(HW_REG_XCC_ID)
        s_waitcnt lgkmcnt(0)
        s_lshl_b32 s13, s2, 4
        s_add_u32 s13, s13, s3
        s_lshl_b32 s13, s13, 8
        s_add_u32 s13, s13, {STAMP_OFF}
        v_mov_b32 v3, 0
        s_mov_b64 exec, 1
        """)
        for i in range(13):
            lo = 64 + 2 * i if i < 10 else {10: 94, 11: 100, 12: 84}[i]
            a(f"v_mov_b32 v6, s{lo}\nv_mov_b32 v7, s{lo+1}")
            a(f"buffer_store_dwordx2 v[6:7], v3, s[52:55], s13 offen offset:{8*i}")
            a("s_nop 1")
        a("s_waitcnt vmcnt(0)")
    a("L_end:\ns_endpgm\nL_codeend:")
    lines, n = hazard.fix(a.l)
    hdr = open("cdna_kernels/" + NAME + ".s.ref").read().split("; Override")[0] if False else ""
    return header(256, 320, LDS_BYTES) + "\n".join(lines) + "\n" + footer(160)

if __name__ == "__main__":
    kw = json.loads(sys.argv[2]) if len(sys.argv) > 2 else {}
    open(sys.argv[1], "w").write(gen(**kw))
```

```python
import re

TRANS = ("v_exp_f32", "v_log_f32", "v_rcp_f32", "v_rsq_f32", "v_sqrt_f32", "v_sin_f32", "v_cos_f32", "v_rcp_iflag_f32")

def regs(tok):
    tok = tok.strip()
    neg = tok.lstrip("-")
    m = re.fullmatch(r"abs\((.*)\)", neg)
    if m: neg = m.group(1)
    m = re.fullmatch(r"\|(.*)\|", neg)
    if m: neg = m.group(1)
    m = re.fullmatch(r"([vsa])\[(\d+):(\d+)\]", neg)
    if m: return {(m.group(1), i) for i in range(int(m.group(2)), int(m.group(3)) + 1)}
    m = re.fullmatch(r"([vsa])(\d+)", neg)
    if m: return {(m.group(1), int(m.group(2)))}
    if neg == "vcc": return {("s", "vcc_lo"), ("s", "vcc_hi")}
    if neg in ("vcc_lo", "vcc_hi", "m0", "exec_lo", "exec_hi"): return {("s", neg)}
    if neg == "exec": return {("s", "exec_lo"), ("s", "exec_hi")}
    return set()

EXEC = {("s", "exec_lo"), ("s", "exec_hi")}
VCC = {("s", "vcc_lo"), ("s", "vcc_hi")}

class I:
    def __init__(self, line):
        self.line = line
        s = line.split(";")[0].strip()
        self.label = s[:-1] if s.endswith(":") else None
        self.dirv = s.startswith(".")
        self.empty = (s == "") or self.label is not None or self.dirv
        self.op = ""; self.cls = "none"; self.w = set(); self.r = set(); self.slots = 0
        self.dpp = set(); self.target = None; self.passes = 0
        self.A = self.B = self.C = set(); self.sdata = set(); self.lds = False
        if self.empty: return
        parts = s.split(None, 1)
        op = parts[0]; self.op = op
        rest = parts[1] if len(parts) > 1 else ""
        toks = [t.strip() for t in rest.split(",")]
        ops = []
        for t in toks:
            ops.append(t.split()[0] if t.split() else "")
        mods = rest
        self.slots = 1
        base = re.sub(r"_(e32|e64|dpp|sdwa)$", "", op)
        self.base = base
        if op == "s_nop":
            self.slots = int(ops[0], 0) + 1; self.cls = "nop"; return
        if op.startswith("s_cbranch") or op == "s_branch":
            self.cls = "branch"; self.target = ops[0]; return
        if op in ("s_waitcnt", "s_barrier", "s_endpgm", "s_sleep", "s_setprio"):
            self.cls = "misc"; return
        if op.startswith("s_load") or op.startswith("s_mem") or op.startswith("s_buffer_load"):
            self.cls = "smem"; self.w = regs(ops[0]); self.r = set().union(*[regs(o) for o in ops[1:]]) if len(ops) > 1 else set(); return
        if op.startswith("s_"):
            self.cls = "salu"
            if op.startswith("s_cmp") or op.startswith("s_bitcmp"):
                self.r = set().union(*[regs(o) for o in ops])
            else:
                self.w = regs(ops[0]); self.r = set().union(*[regs(o) for o in ops[1:]]) if len(ops) > 1 else set()
                if "saveexec" in op: self.w |= EXEC
            return
        if op.startswith("v_mfma"):
            self.cls = "mfma"
            self.w = regs(ops[0]); self.A = regs(ops[1]); self.B = regs(ops[2]); self.C = regs(ops[3])
            self.r = self.A | self.B | self.C
            self.passes = 8 if "32x32" in op else 4
            if "16x16x4_f32" in op: self.passes = 8
            return
        if op.startswith("v_"):
            self.cls = "valu"
            self.w = regs(ops[0]); srcs = ops[1:]
            if base in ("v_add_co_u32", "v_sub_co_u32", "v_addc_co_u32", "v_subb_co_u32", "v_div_scale_f32"):
                self.w |= regs(ops[1]); srcs = ops[2:]
            self.r = set().union(*[regs(o) for o in srcs]) if srcs else set()
            if base.startswith("v_cmpx"): self.w |= EXEC
            if base.startswith("v_permlane"): self.w |= regs(ops[1]); self.r |= regs(ops[0])
            if base in ("v_fmac_f32", "v_dot2c_f32_bf16", "v_writelane_b32"): self.r |= regs(ops[0])
            if base == "v_cndmask_b32" and len(ops) == 3: self.r |= VCC
            if base == "v_div_fmas_f32": self.r |= VCC
            if "row_" in mods or "quad_perm" in mods or "wave_" in mods:
                self.dpp = regs(ops[1]); self.r |= regs(ops[0])
            return
        if op.startswith("buffer_") or op.startswith("global_"):
            self.cls = "vmem"
            self.lds = (" lds" in " " + mods) or "load_lds" in op
            allr = [regs(o) for o in ops]
            if "store" in op or "atomic" in op:
                self.r = set().union(*allr)
                d = ops[0] if op.startswith("buffer_") else ops[1]
                if "x3" in op or "x4" in op: self.sdata = regs(d)
            elif self.lds or op in ("buffer_inv", "buffer_wbl2"):
                self.r = set().union(*allr) if allr else set()
            else:
                self.w = allr[0]; self.r = set().union(*allr[1:])
            return
        if op.startswith("ds_"):
            self.cls = "ds"
            allr = [regs(o) for o in ops]
            if op.startswith("ds_read") or op.startswith("ds_bpermute") or op.startswith("ds_swizzle") or op.startswith("ds_permute"):
                self.w = allr[0]; self.r = set().union(*allr[1:])
            else:
                self.r = set().union(*allr)
            return
        raise ValueError("unknown instruction: " + line)

def vg(s): return {x for x in s if x[0] in "va"}
def sg(s): return {x for x in s if x[0] == "s"}

def need(p, c):
    n = 0
    if p.cls == "valu":
        pv, ps = vg(p.w), sg(p.w)
        if c.cls == "mfma" and pv & c.r: n = max(n, 2)
        if c.cls == "valu":
            if pv & c.dpp: n = max(n, 2)
            if c.base.startswith("v_permlane") and pv & c.r: n = max(n, 2)
            if c.base in ("v_readlane_b32", "v_readfirstlane_b32") and pv & c.r: n = max(n, 1)
            if ps & sg(c.r):
                n = max(n, 4 if (c.base in ("v_readlane_b32", "v_writelane_b32", "v_div_fmas_f32")) else 2)
            if p.base in TRANS and pv & c.r and c.base not in TRANS: n = max(n, 1)
            if p.base in TRANS and pv & c.r: n = max(n, 1)
            if ps & EXEC:
                if c.dpp: n = max(n, 5)
                if c.base in ("v_readlane_b32", "v_readfirstlane_b32", "v_writelane_b32") or c.base.startswith("v_permlane"): n = max(n, 4)
        if c.cls == "mfma" and ps & EXEC: n = max(n, 4)
        if c.cls == "vmem" and ps & sg(c.r): n = max(n, 5)
        if c.cls in ("salu", "branch") and (ps & (sg(c.r) | (VCC if "vcc" in c.op else set()) | (EXEC if "exec" in c.op else set()))): n = max(n, 2)
        if p.base in TRANS and c.cls in ("vmem", "ds", "mfma") and pv & c.r: n = max(n, 2 if c.cls == "mfma" else 1)
    if p.cls == "salu":
        if ("s", "m0") in p.w and c.cls == "vmem" and c.lds: n = max(n, 1)
        if p.w & EXEC and c.cls == "valu" and c.dpp: n = max(n, 2)
    if p.cls == "vmem" and p.sdata and c.cls in ("valu", "mfma") and p.sdata & c.w: n = max(n, 2)
    if p.cls == "vmem" and p.sdata and c.cls in ("vmem", "ds") and p.sdata & c.w: n = max(n, 1)
    if p.cls == "mfma":
        big = {4: 8, 8: 12}[p.passes]
        if c.cls == "mfma":
            if p.w & (c.A | c.B): n = max(n, big)
            if p.w & c.C and not (p.w == c.C and p.passes == c.passes): n = max(n, {4: 6, 8: 10}[p.passes])
            if p.w & c.w and not (p.w == c.C): n = max(n, {4: 6, 8: 10}[p.passes])
        elif c.cls in ("valu", "vmem", "ds"):
            if p.w & (c.r | c.w): n = max(n, big)
            if c.cls == "valu" and p.C & c.w: n = max(n, {4: 3, 8: 7}[p.passes])
    return n

def fix(lines, verbose=False):
    ins = [I(l) for l in lines]
    changed = True; total = 0
    while changed:
        changed = False
        labels = {x.label: i for i, x in enumerate(ins) if x.label}
        preds = {}
        for i, x in enumerate(ins):
            if x.cls == "branch" and x.target in labels:
                preds.setdefault(labels[x.target], []).append(i)
        def walk_back(i, dist, c, seen):
            miss = 0
            j = i - 1
            while j >= 0 and dist < 20:
                p = ins[j]
                if p.label and j in preds:
                    for b in preds[j]:
                        if (b, dist) not in seen:
                            seen.add((b, dist))
                            miss = max(miss, walk_back(b, dist + 1, c, seen))
                if not p.empty:
                    if p.op in ("s_branch", "s_endpgm"):
                        return miss
                    k = need(p, c)
                    if k > dist: miss = max(miss, k - dist)
                    dist += p.slots
                j -= 1
            return miss
        for i, c in enumerate(ins):
            if c.empty or c.cls in ("nop", "misc"): continue
            m = walk_back(i, 0, c, set())
            if m > 0:
                ins.insert(i, I(f"    s_nop {m-1}"))
                total += m
                if verbose: print(f"hazard: +{m} before: {c.line.strip()}")
                changed = True
                break
    return [x.line for x in ins], total
```

```python
import sys, json
from asmlib import *
import hazard

WS_Q, WS_ST, WS_O, WS_S, WS_F = 0x1000, 0x41000, 0x44000, 0x144000, 0x224000
L_K, L_V, L_WQ = 0, 65536, 131072
L_XN = L_WQ + 14336
L_Q = L_XN + 1792
L_P = L_Q + 1024
L_MX = L_P + 512
L_LS = L_MX + 32
L_TAG = L_LS + 32
L_END = L_TAG + 32
L_W2 = 28672
LDS_BYTES = 149504
RSTR = 928
TAG_MUL, TAG_INC = 0x9E3779B1, 0x7F4A7C15
LOG2E = 1.4426950408889634
import struct
def f2u(x): return struct.unpack("<I", struct.pack("<f", x))[0]

def gen(stamps=False, dbgst=False, depth=7, vthr=8, spin=100000, pref=True, nt="nt"):
    a = Asm()
    if dbgst: stamps = True
    NT = " " + nt if nt else ""
    nst = [0]
    def stamp(i):
        r = 64 + 2 * i if i < 10 else {10: 94, 11: 100}[i]
        if stamps: a(f"s_memrealtime s[{r}:{r+1}]")
    def srd(r, lo, size):
        a(f"s_mov_b32 s{r}, s{lo}\ns_mov_b32 s{r+1}, s{lo+1}\ns_mov_b32 s{r+2}, {size}\ns_mov_b32 s{r+3}, 0x20000")
    def allred_row(op, regs, steps=(8, 4, 2, 1)):
        for st in steps:
            for r in regs:
                a(f"v_{op}_f32_dpp v{r}, v{r}, v{r} row_ror:{st} row_mask:0xf bank_mask:0xf")
    def allred_x(op, regs, tmps, kinds=(16, 32)):
        for k in kinds:
            for r, t in zip(regs, tmps): a(f"v_mov_b32 v{t}, v{r}")
            for r, t in zip(regs, tmps): a(f"v_permlane{k}_swap_b32 v{r}, v{t}")
            for r, t in zip(regs, tmps): a(f"v_{op}_f32 v{r}, v{r}, v{t}")
    def bfround(pairs, tmp):
        for i, (lo, hi) in enumerate(pairs): a(f"v_cvt_pk_bf16_f32 v{tmp+i}, v{lo}, v{hi}")
        for i, (lo, hi) in enumerate(pairs):
            a(f"v_lshlrev_b32 v{lo}, 16, v{tmp+i}")
            a(f"v_and_b32 v{hi}, 0xffff0000, v{tmp+i}")
    def check_tags(regs, ok, again, cnt):
        for r in regs: a(f"v_cmpx_eq_u32 vcc, v4, v{r}")
        a(f"""
        s_cmp_eq_u64 exec, -1
        s_mov_b64 exec, -1
        s_cbranch_scc1 {ok}
        s_sub_u32 s{cnt}, s{cnt}, 1
        s_cmp_gt_i32 s{cnt}, 0
        s_cbranch_scc1 {again}
        """)

    a(f"""
    s_cmp_ge_u32 s2, 256
    s_cbranch_scc1 L_end
    """)
    stamp(0)
    a(f"""
    s_load_dwordx16 s[16:31], s[0:1], 0
    s_load_dwordx8 s[32:39], s[0:1], 64
    s_load_dwordx2 s[40:41], s[0:1], 96
    v_lshrrev_b32 v2, 6, v0
    v_and_b32 v1, 63, v0
    v_readfirstlane_b32 s3, v2
    s_and_b32 s4, s2, 7
    s_lshr_b32 s5, s2, 3
    s_lshr_b32 s6, s5, 4
    s_and_b32 s7, s5, 15
    v_lshrrev_b32 v2, 4, v1
    v_and_b32 v3, 15, v1
    s_mov_b32 s42, {spin}
    s_cmp_eq_u32 s3, 0
    s_cbranch_scc1 L_aux
    """)
    a(f"""
    s_sub_u32 s8, s3, 1
    v_lshrrev_b32 v8, 5, v1
    s_lshl_b32 s9, s8, 1
    v_add_u32 v9, s9, v8
    v_and_b32 v10, 31, v1
    v_xor_b32 v11, v10, v9
    v_lshlrev_b32 v8, 9, v8
    v_lshl_add_u32 v5, v11, 4, v8
    v_xor_b32 v6, 0x80, v5
    v_lshlrev_b32 v9, 1, v9
    v_xor_b32 v11, v10, v9
    v_lshl_add_u32 v7, v11, 4, v8
    s_lshl_b32 s10, s6, 25
    s_lshl_b32 s11, s4, 22
    s_add_u32 s10, s10, s11
    s_lshl_b32 s11, s7, 16
    s_add_u32 s10, s10, s11
    s_lshl_b32 s12, s8, 10
    s_add_u32 s10, s10, s12
    s_add_u32 s10, s10, {6144*512}
    s_lshl_b32 s11, s7, 12
    s_waitcnt lgkmcnt(0)
    """)
    srd(44, 18, 0x4000000); srd(48, 20, 0x4000000); srd(52, 40, 0x10000000)
    a(f"""
    s_mov_b32 s14, 8
    s_barrier
    L_kloop:
    """)
    def dma_step(v, s):
        a(f"""
        s_add_u32 s13, s10, s11
        s_mov_b32 m0, s12
        s_add_u32 s11, s11, 4096
        buffer_load_dwordx4 v{v}, s[{s}:{s+3}], s13 offen{NT} lds
        s_and_b32 s11, s11, 0xffff
        s_add_u32 s12, s12, 4096
        """)
    dma_step(5, 44)
    if depth: a(f"s_waitcnt vmcnt({depth-1})")
    dma_step(6, 44)
    if depth: a(f"s_waitcnt vmcnt({depth-1})")
    a("""
    s_sub_u32 s14, s14, 1
    s_cmp_lg_u32 s14, 0
    s_cbranch_scc1 L_kloop
    """)
    stamp(1)
    if vthr and depth:
        a(f"s_mov_b32 s14, {vthr}\nL_vloop1:")
        dma_step(7, 48)
        a(f"""
        s_waitcnt vmcnt({depth-1})
        s_sub_u32 s14, s14, 1
        s_cmp_lg_u32 s14, 0
        s_cbranch_scc1 L_vloop1
        """)
    rest = 16 - (vthr if depth else 0)
    if rest:
        a(f"s_mov_b32 s14, {rest}\nL_vloop2:")
        dma_step(7, 48)
        a("""
        s_sub_u32 s14, s14, 1
        s_cmp_lg_u32 s14, 0
        s_cbranch_scc1 L_vloop2
        """)
    stamp(2)
    a("s_branch L_att")

    a(f"""
    L_aux:
    v_lshrrev_b32 v8, 3, v1
    v_lshrrev_b32 v9, 4, v1
    v_and_b32 v9, 3, v9
    v_lshlrev_b32 v9, 1, v9
    v_and_b32 v10, 7, v1
    v_xor_b32 v10, v10, v9
    v_lshlrev_b32 v8, 13, v8
    v_lshl_add_u32 v5, v10, 4, v8
    v_lshlrev_b32 v6, 4, v1
    s_lshr_b32 s8, s5, 3
    s_and_b32 s9, s5, 7
    s_mul_i32 s10, s8, {112*8192}
    s_lshl_b32 s11, s4, 10
    s_add_u32 s10, s10, s11
    s_lshl_b32 s11, s9, 7
    s_add_u32 s10, s10, s11
    s_mov_b32 s12, {L_WQ}
    s_mov_b32 s14, 14
    """)
    for r in range(8, 16): a(f"v_mov_b32 v{r}, 0")
    a("s_waitcnt lgkmcnt(0)")
    srd(44, 22, 448*8192); srd(52, 40, 0x10000000)
    a(f"""
    s_mov_b32 exec_hi, 0x00ffffff
    global_load_dwordx4 v[8:11], v6, s[16:17]
    global_load_dwordx4 v[12:15], v6, s[16:17] offset:896
    s_mov_b32 exec_hi, -1
    buffer_load_dword v4, off, s[52:55], 0 sc1
    L_wqloop:
    s_mov_b32 m0, s12
    s_add_u32 s12, s12, 1024
    buffer_load_dwordx4 v5, s[44:47], s10 offen{NT} lds
    s_add_u32 s10, s10, {8*8192}
    s_sub_u32 s14, s14, 1
    s_cmp_lg_u32 s14, 0
    s_cbranch_scc1 L_wqloop
    s_barrier
    """)
    npre = 0
    if pref:
        a(f"""
        s_getpc_b64 s[14:15]
        L_pc:
        s_sub_u32 s14, s14, L_pc-{NAME}_kernel
        s_subb_u32 s15, s15, 0
        s_lshl_b32 s13, s5, 9
        v_lshl_add_u32 v7, v1, 3, s13
        v_min_u32 v7, L_codeend-{NAME}_kernel-8, v7
        global_load_dwordx2 v[120:121], v7, s[14:15]
        """)
        npre = 1
    stamp(1)
    a(f"s_waitcnt vmcnt({14+npre})")
    for i in range(8):
        a(f"v_lshlrev_b32 v{20+2*i}, 16, v{8+i}")
        a(f"v_and_b32 v{21+2*i}, 0xffff0000, v{8+i}")
    a("""
    v_add_f32 v36, v20, v21
    v_add_f32 v37, v28, v29
    """)
    for i in range(2, 8):
        a(f"v_add_f32 v36, v36, v{20+i}")
        a(f"v_add_f32 v37, v37, v{28+i}")
    allred_row("add", [36, 37]); allred_x("add", [36, 37], [38, 39])
    inv = f2u(1.0 / 448)
    a(f"""
    v_mul_f32 v36, {inv:#x}, v36
    v_mul_f32 v37, {inv:#x}, v37
    v_mov_b32 v40, 0
    v_mov_b32 v41, 0
    s_mov_b32 exec_hi, 0x00ffffff
    """)
    for i in range(8):
        a(f"v_sub_f32 v42, v{20+i}, v36")
        a(f"v_sub_f32 v43, v{28+i}, v37")
        a(f"v_fmac_f32 v40, v42, v42")
        a(f"v_fmac_f32 v41, v43, v43")
    a("s_mov_b32 exec_hi, -1")
    allred_row("add", [40, 41]); allred_x("add", [40, 41], [38, 39])
    a(f"""
    v_mul_f32 v40, {inv:#x}, v40
    v_mul_f32 v41, {inv:#x}, v41
    """)
    bfround([(40, 41), (36, 37)], 38)
    eps = f2u(1e-5)
    a(f"""
    v_add_f32 v40, {eps:#x}, v40
    v_add_f32 v41, {eps:#x}, v41
    """)
    bfround([(40, 41)], 38)
    a("""
    v_sqrt_f32 v40, v40
    v_sqrt_f32 v41, v41
    """)
    bfround([(40, 41)], 38)
    a("""
    v_rcp_f32 v40, v40
    v_rcp_f32 v41, v41
    """)
    for i in range(8):
        a(f"v_sub_f32 v{20+i}, v{20+i}, v36")
        a(f"v_sub_f32 v{28+i}, v{28+i}, v37")
    bfround([(20+2*i, 21+2*i) for i in range(8)], 44)
    for i in range(8):
        a(f"v_mul_f32 v{20+i}, v{20+i}, v40")
        a(f"v_mul_f32 v{28+i}, v{28+i}, v41")
    for i in range(8):
        a(f"v_cvt_pk_bf16_f32 v{44+i}, v{20+2*i}, v{21+2*i}")
    a(f"""
    v_add_u32 v7, {L_XN}, v6
    s_mov_b32 exec_hi, 0x00ffffff
    ds_write_b128 v7, v[44:47]
    ds_write_b128 v7, v[48:51] offset:896
    s_mov_b32 exec_hi, -1
    ; tag
    s_mov_b32 s13, {TAG_MUL:#x}
    v_mul_lo_u32 v4, v4, s13
    v_add_u32 v4, {TAG_INC:#x}, v4
    v_and_b32 v7, 7, v1
    v_lshlrev_b32 v7, 2, v7
    v_add_u32 v7, {L_TAG}, v7
    ds_write_b32 v7, v4
    v_and_b32 v8, 1, v3
    v_mul_u32_u24 v9, 896, v8
    s_mul_i32 s13, s8, 224
    s_add_u32 s13, s13, {L_XN}
    v_lshl_add_u32 v9, v2, 3, v9
    v_add_u32 v9, s13, v9
    v_lshrrev_b32 v10, 2, v3
    v_lshl_add_u32 v11, v2, 2, v10
    v_lshrrev_b32 v12, 1, v11
    v_and_b32 v12, 3, v12
    v_lshlrev_b32 v12, 5, v12
    v_and_b32 v13, 3, v3
    v_lshlrev_b32 v13, 3, v13
    v_xor_b32 v12, v12, v13
    v_lshl_add_u32 v12, v11, 7, v12
    v_add_u32 v12, {L_WQ}, v12
    v_xor_b32 v13, 32, v12
    v_xor_b32 v14, 64, v12
    v_xor_b32 v15, 96, v12
    s_waitcnt lgkmcnt(0)
    """)
    for s in range(3): a(f"ds_read2_b64 v[{20+4*s}:{23+4*s}], v9 offset0:{8*s} offset1:{8*s+4}")
    a("ds_read_b64 v[32:33], v9 offset:192")
    stamp(2)
    a(f"s_waitcnt vmcnt({npre})")
    stamp(3)
    for s in range(4):
        for t in range(4):
            b = 40 + 14 * t + 4 * s
            a(f"ds_read_b64_tr_b16 v[{b}:{b+1}], v{12+t} offset:{s*4096}")
            if s < 3: a(f"ds_read_b64_tr_b16 v[{b+2}:{b+3}], v{12+t} offset:{s*4096+2048}")
    for s in range(4):
        rem = [20, 12, 4, 0][s]
        a(f"s_waitcnt lgkmcnt({min(rem,15)})")
        for t in range(4):
            b = 40 + 14 * t + 4 * s
            c = f"v[{96+4*t}:{99+4*t}]" if s else "0"
            if s < 3: a(f"v_mfma_f32_16x16x32_bf16 v[{96+4*t}:{99+4*t}], v[{20+4*s}:{23+4*s}], v[{b}:{b+3}], {c}")
            else: a(f"v_mfma_f32_16x16x16_bf16 v[{96+4*t}:{99+4*t}], v[32:33], v[{b}:{b+1}], {c}")
    def lane_masks():
        a("""
        s_mov_b32 s56, 0xffff0000
        s_mov_b32 s57, 0
        s_mov_b32 s58, 0
        s_mov_b32 s59, 0x0000ffff
        s_mov_b32 s60, 0
        s_mov_b32 s61, 0xffff0000
        s_mov_b32 s62, 0xaaaaaaaa
        s_mov_b32 s63, 0xaaaaaaaa
        """)
    lane_masks()
    a(f"""
    v_lshlrev_b32 v16, 14, v8
    v_and_b32 v17, 14, v3
    v_lshl_add_u32 v17, v2, 4, v17
    v_lshl_add_u32 v16, v17, 3, v16
    s_lshl_b32 s10, s4, 15
    s_lshl_b32 s11, s8, 12
    s_add_u32 s10, s10, s11
    s_lshl_b32 s11, s9, 9
    s_add_u32 s10, s10, s11
    s_add_u32 s10, s10, {WS_Q}
    v_mov_b32 v21, v4
    v_mov_b32 v23, v4
    """)
    def seltile(d0, d1, base):
        for d, i in ((d0, 0), (d1, 1)):
            a(f"v_cndmask_b32 v{d}, v{base+i}, v{base+4+i}, s[56:57]")
        for d, i in ((d0, 0), (d1, 1)):
            a(f"v_cndmask_b32 v{d}, v{d}, v{base+8+i}, s[58:59]")
        for d, i in ((d0, 0), (d1, 1)):
            a(f"v_cndmask_b32 v{d}, v{d}, v{base+12+i}, s[60:61]")
    seltile(24, 25, 96)
    def pairup(x0, x1, d0, d2, t0, t1):
        a(f"""
        v_mov_b32_dpp v{t0}, v{x0} quad_perm:[1,0,3,2] row_mask:0xf bank_mask:0xf
        v_mov_b32_dpp v{t1}, v{x1} quad_perm:[1,0,3,2] row_mask:0xf bank_mask:0xf
        v_cndmask_b32 v{d0}, v{x0}, v{t1}, s[62:63]
        v_cndmask_b32 v{d2}, v{t0}, v{x1}, s[62:63]
        """)
    pairup(24, 25, 20, 22, 26, 27)
    a("buffer_store_dwordx4 v[20:23], v16, s[52:55], s10 offen sc1")
    stamp(4)
    a(f"""
    s_lshl_b32 s10, s4, 1
    s_add_u32 s10, s10, s6
    s_lshl_b32 s10, s10, 14
    s_add_u32 s10, s10, {WS_Q}
    s_add_u32 s11, s10, 4096
    s_add_u32 s12, s10, 8192
    s_add_u32 s13, s10, 12288
    v_and_b32 v16, 31, v1
    v_lshlrev_b32 v16, 9, v16
    L_qpoll1:
    buffer_load_dwordx2 v[18:19], v16, s[52:55], s10 offen offset:504 sc1
    s_waitcnt vmcnt(0)
    """)
    check_tags([19], "L_qpoll2", "L_qpoll1", 42)
    a("L_qpoll2:")
    stamp(5)
    a("L_qpoll3:")
    for rg in range(4):
        for u in range(4):
            b = 32 + 16 * rg + 4 * u
            a(f"buffer_load_dwordx4 v[{b}:{b+3}], v6, s[52:55], s{10+rg} offen offset:{u*1024} sc1")
    a("s_waitcnt vmcnt(0)")
    check_tags([32 + 2 * i + 1 for i in range(32)], "L_qok", "L_qpoll3", 42)
    a("L_qok:")
    for rg in range(1, 4):
        for u in range(4):
            for e in (0, 2):
                a(f"v_add_f32 v{32+4*u+e}, v{32+4*u+e}, v{32+16*rg+4*u+e}")
    for u in range(4): a(f"v_cvt_pk_bf16_f32 v{20+u}, v{32+4*u}, v{34+4*u}")
    a(f"v_lshlrev_b32 v16, 2, v1\nv_add_u32 v16, {L_Q}, v16")
    for u in range(4): a(f"ds_write_b32 v16, v{20+u} offset:{256*u}")
    a("s_waitcnt lgkmcnt(0)")
    stamp(6)
    a("s_barrier")
    a("s_branch L_done")

    a(f"""
    L_att:
    s_lshl_b32 s13, s8, 5
    v_add_u32 v8, s13, v3
    v_xor_b32 v9, v2, v3
    v_lshlrev_b32 v9, 4, v9
    v_lshl_add_u32 v8, v8, 9, v9
    v_xor_b32 v9, 64, v8
    v_xor_b32 v10, 0x80, v8
    v_xor_b32 v11, 0xc0, v8
    v_and_b32 v13, 1, v3
    v_lshlrev_b32 v12, 9, v13
    v_lshl_add_u32 v12, v2, 4, v12
    v_add_u32 v12, {L_Q}, v12
    v_lshrrev_b32 v14, 2, v3
    v_lshl_add_u32 v14, v2, 2, v14
    v_and_b32 v15, 7, v14
    v_lshlrev_b32 v15, 5, v15
    v_and_b32 v16, 3, v3
    v_lshlrev_b32 v16, 3, v16
    s_lshl_b32 s13, s8, 7
    v_add_u32 v16, s13, v16
    v_xor_b32 v16, v16, v15
    v_lshl_add_u32 v16, v14, 9, v16
    v_add_u32 v16, {L_V}, v16
    v_xor_b32 v17, 32, v16
    v_xor_b32 v18, 64, v16
    v_xor_b32 v19, 96, v16
    v_lshlrev_b32 v20, 4, v13
    v_lshl_add_u32 v22, v2, 5, v20
    v_add_u32 v20, {L_MX}, v20
    s_lshl_b32 s13, s8, 2
    v_add_u32 v21, s13, v20
    v_add_u32 v22, {L_P}, v22
    s_lshl_b32 s13, s8, 7
    v_add_u32 v23, s13, v22
    """)
    lane_masks()
    a(f"""
    s_mul_i32 s89, s4, 7
    s_add_u32 s89, s89, s7
    s_min_u32 s90, s89, 55
    s_cmp_eq_u32 s6, 0
    s_cbranch_scc0 L_role_b1
    s_mov_b32 s96, s24
    s_mov_b32 s97, s25
    s_mov_b32 s98, {4096*896}
    s_lshl_b32 s84, s4, 9
    s_lshl_b32 s13, s7, 4
    s_add_u32 s84, s84, s13
    s_lshl_b32 s13, s8, 2
    s_add_u32 s84, s84, s13
    s_mul_i32 s84, s84, 896
    s_mov_b32 s85, {256*896}
    s_mov_b32 s86, 896
    s_mov_b32 s88, {RSTR}
    v_lshlrev_b32 v24, 4, v1
    s_branch L_role_set
    L_role_b1:
    s_mov_b32 s96, s28
    s_mov_b32 s97, s29
    s_cmp_lt_u32 s7, 7
    s_cselect_b32 s98, {448*3584}, 0
    s_mul_i32 s84, s8, {8*14*3584}
    s_lshl_b32 s13, s90, 6
    s_add_u32 s84, s84, s13
    s_mov_b32 s85, {14*3584}
    s_mov_b32 s86, {28*3584}
    s_mov_b32 s88, 896
    v_lshrrev_b32 v24, 2, v1
    v_mul_u32_u24 v24, 3584, v24
    v_and_b32 v25, 3, v1
    v_lshl_add_u32 v24, v25, 4, v24
    L_role_set:
    s_mov_b32 s99, 0x20000
    s_lshl_b32 s87, s88, 3
    s_mul_i32 s87, s87, s8
    s_lshl_b32 s13, s90, 6
    v_lshl_add_u32 v25, v2, 3, s13
    s_waitcnt vmcnt(16)
    """)
    stamp(3)
    a("s_barrier")
    stamp(4)
    pc = [0]
    def post(n):
        a("s_mov_b32 exec_hi, 0x00ffffff")
        for _ in range(n):
            i = pc[0]; pc[0] += 1
            if i & 1: a("s_add_u32 s13, s84, s85\ns_add_u32 s84, s84, s86")
            else: a("s_mov_b32 s13, s84")
            a(f"""
            s_mov_b32 m0, s87
            s_add_u32 s87, s87, s88
            buffer_load_dwordx4 v24, s[96:99], s13 offen{NT} lds
            """)
        a("s_mov_b32 exec_hi, -1")
    a(f"ds_read_b32 v4, v20 offset:{L_TAG-L_MX}")
    for s in range(8):
        a(f"ds_read_b128 v[{32+4*s}:{35+4*s}], v12 offset:{64*s}")
        a(f"ds_read_b128 v[{64+4*s}:{67+4*s}], v{8+(s&3)} offset:{(s>>2)*256}")
        a(f"ds_read_b128 v[{96+4*s}:{99+4*s}], v{8+(s&3)} offset:{(s>>2)*256+8192}")
    for s in range(8):
        a(f"s_waitcnt lgkmcnt({min(15, 21-3*s)})")
        cx = "v[128:131]" if s else "0"; cy = "v[132:135]" if s else "0"
        a(f"v_mfma_f32_16x16x32_bf16 v[128:131], v[{64+4*s}:{67+4*s}], v[{32+4*s}:{35+4*s}], {cx}")
        a(f"v_mfma_f32_16x16x32_bf16 v[132:135], v[{96+4*s}:{99+4*s}], v[{32+4*s}:{35+4*s}], {cy}")
    bfround([(128+2*i, 129+2*i) for i in range(4)], 32)
    a("""
    v_max3_f32 v36, v128, v129, v130
    v_max3_f32 v37, v131, v132, v133
    v_max3_f32 v36, v36, v134, v135
    v_max_f32 v36, v36, v37
    """)
    allred_x("max", [36], [37])
    c = f2u(LOG2E / 16)
    a(f"""
    s_mov_b64 exec, 3
    ds_write_b32 v21, v36
    s_mov_b64 exec, -1
    s_waitcnt lgkmcnt(0)
    s_barrier
    ds_read_b128 v[36:39], v20
    """)
    post(2)
    a(f"""
    global_load_dwordx2 v[28:29], v25, s[30:31]
    global_load_dwordx2 v[30:31], v25, s[30:31] offset:32
    s_mov_b32 s13, {c:#x}
    s_waitcnt lgkmcnt(0)
    v_max3_f32 v36, v36, v37, v38
    v_max_f32 v36, v36, v39
    v_mul_f32 v26, s13, v36
    """)
    for i in range(8): a(f"v_fma_f32 v{128+i}, v{128+i}, s13, -v26")
    for i in range(8): a(f"v_exp_f32 v{128+i}, v{128+i}")
    for i in range(4): a(f"v_cvt_pk_bf16_f32 v{32+i}, v{128+2*i}, v{129+2*i}")
    a("""
    v_add_f32 v36, v128, v129
    v_add_f32 v37, v130, v131
    v_add_f32 v38, v132, v133
    v_add_f32 v39, v134, v135
    v_add_f32 v36, v36, v37
    v_add_f32 v38, v38, v39
    v_add_f32 v36, v36, v38
    s_mov_b32 exec_lo, 0x00030003
    s_mov_b32 exec_hi, 0x00030003
    ds_write_b128 v23, v[32:35]
    s_mov_b64 exec, -1
    """)
    allred_x("add", [36], [37])
    a(f"""
    s_mov_b64 exec, 3
    ds_write_b32 v21, v36 offset:32
    s_mov_b64 exec, -1
    s_lshl_b32 s91, s4, 1
    s_add_u32 s91, s91, s6
    s_lshl_b32 s91, s91, 4
    s_add_u32 s91, s91, s7
    s_lshl_b32 s91, s91, 5
    s_add_u32 s91, s91, {WS_ST}
    v_lshlrev_b32 v27, 4, v13
    ; o: WS_O + (h*16 + 4a + g)*8192 + b*4096 + j*256 + n*16
    s_lshl_b32 s92, s4, 4
    s_lshl_b32 s13, s8, 2
    s_add_u32 s92, s92, s13
    s_lshl_b32 s92, s92, 13
    s_lshl_b32 s13, s6, 12
    s_add_u32 s92, s92, s13
    s_lshl_b32 s13, s7, 8
    s_add_u32 s92, s92, s13
    s_add_u32 s92, s92, {WS_O}
    v_lshlrev_b32 v15, 13, v2
    v_lshl_add_u32 v15, v3, 4, v15
    s_waitcnt vmcnt(16) lgkmcnt(0)
    """)
    stamp(5)
    a("s_barrier")
    for s in range(4): a(f"ds_read_b128 v[{32+4*s}:{35+4*s}], v22 offset:{128*s}")
    a("ds_read_b128 v[48:51], v20 offset:32")
    def stage(s):
        for t in range(4):
            a(f"ds_read_b64_tr_b16 v[{64+4*t}:{65+4*t}], v{16+t} offset:{s*16384}")
            a(f"ds_read_b64_tr_b16 v[{66+4*t}:{67+4*t}], v{16+t} offset:{s*16384+8192}")
    def stage_mm(s):
        for t in range(4):
            a(f"s_waitcnt lgkmcnt({6-2*t})")
            cc = f"v[{128+4*t}:{131+4*t}]" if s else "0"
            a(f"v_mfma_f32_16x16x32_bf16 v[{128+4*t}:{131+4*t}], v[{32+4*s}:{35+4*s}], v[{64+4*t}:{67+4*t}], {cc}")
    stage(0)
    a(f"""
    s_waitcnt lgkmcnt(8)
    v_add_f32 v48, v48, v49
    v_add_f32 v50, v50, v51
    v_mov_b32 v52, v26
    v_mov_b32 v53, v4
    v_add_f32 v54, v48, v50
    v_mov_b32 v55, v4
    s_and_b32 s13, s8, 1
    s_lshl_b32 exec_lo, 1, s13
    s_mov_b32 exec_hi, 0
    buffer_store_dwordx4 v[52:55], v27, s[52:55], s91 offen sc1
    s_mov_b64 exec, -1
    """)
    post(2)
    stage_mm(0)
    for s, w in ((1, 15), (2, 13), (3, 11)):
        a(f"s_waitcnt vmcnt({w})")
        if s == 3: stamp(6)
        a("s_barrier")
        stage(s)
        if s < 3: post(2)
        else: a("v_mov_b32 v57, v4\nv_mov_b32 v59, v4")
        stage_mm(s)
    seltile(56, 58, 128)
    a("buffer_store_dwordx4 v[56:59], v15, s[52:55], s92 offen sc1")
    stamp(7)
    a(f"""
    s_cmp_eq_u32 s6, 0
    s_cbranch_scc0 L_b1roles
    """)
    a(f"""
    s_lshr_b32 s9, s8, 1
    s_lshl_b32 s10, s4, 4
    s_add_u32 s10, s10, s7
    s_lshl_b32 s11, s10, 13
    s_lshl_b32 s13, s9, 12
    s_add_u32 s11, s11, s13
    s_add_u32 s11, s11, {WS_O}
    v_lshlrev_b32 v8, 8, v3
    v_lshl_add_u32 v8, v2, 5, v8
    s_lshl_b32 s12, s4, 1
    s_add_u32 s12, s12, s9
    s_lshl_b32 s12, s12, 9
    s_add_u32 s12, s12, {WS_ST}
    v_lshrrev_b32 v9, 1, v2
    v_lshlrev_b32 v9, 4, v9
    v_lshl_add_u32 v9, v3, 5, v9
    """)
    def wo_gather():
        for i, off in enumerate((0, 16, 128, 144)):
            a(f"buffer_load_dwordx4 v[{32+4*i}:{35+4*i}], v8, s[52:55], s11 offen offset:{off} sc1")
        a("buffer_load_dwordx4 v[48:51], v9, s[52:55], s12 offen sc1")
    wo_gather()
    a(f"""
    v_mul_u32_u24 v10, {RSTR}, v14
    v_and_b32 v11, 3, v3
    v_lshl_add_u32 v10, v11, 3, v10
    s_and_b32 s13, s8, 1
    s_mul_i32 s14, s13, 448
    v_add_u32 v10, s14, v10
    s_mul_i32 s14, s9, 28
    s_mul_i32 s13, s13, 14
    s_add_u32 s14, s14, s13
    s_lshl_b32 s14, s14, 14
    s_lshl_b32 s13, s10, 7
    s_add_u32 s14, s14, s13
    s_add_u32 s14, s14, {WS_S}
    s_add_u32 s15, s14, {8*16384}
    v_lshl_add_u32 v11, v13, 2, v2
    v_lshlrev_b32 v11, 14, v11
    v_and_b32 v12, 14, v3
    v_lshl_add_u32 v11, v12, 3, v11
    """)
    for r in range(144, 160): a(f"v_mov_b32 v{r}, 0")
    a("s_waitcnt vmcnt(6)\ns_barrier")
    for t in range(14):
        a(f"ds_read_b64_tr_b16 v[{64+4*t}:{65+4*t}], v10 offset:{32*t}")
        a(f"ds_read_b64_tr_b16 v[{66+4*t}:{67+4*t}], v10 offset:{32*t+16*RSTR}")
    stamp(8)
    a("s_branch L_wo_chk\nL_wo_again:")
    wo_gather()
    a("L_wo_chk:\ns_waitcnt vmcnt(0)")
    check_tags([33, 35, 37, 39, 41, 43, 45, 47, 49, 51], "L_wo_ok", "L_wo_again", 42)
    a("L_wo_ok:")
    stamp(9)
    a("v_mov_b32 v52, v48")
    allred_row("max", [52])
    a("""
    v_sub_f32 v48, v48, v52
    v_exp_f32 v48, v48
    v_mul_f32 v50, v48, v50
    """)
    allred_row("add", [50])
    a("""
    v_rcp_f32 v50, v50
    v_mul_f32 v48, v48, v50
    v_mov_b32 v49, v48
    v_permlane32_swap_b32 v48, v49
    """)
    vals = [32, 34, 36, 38, 40, 42, 44, 46]
    for i, r in enumerate(vals): a(f"v_mul_f32 v{r}, v{r}, v{48 + (i & 1)}")
    allred_row("add", vals)
    def masked_cvt(dst, src):
        for m in range(4):
            mk = 0x000f000f << (4 * m)
            a(f"s_mov_b32 exec_lo, {mk:#x}\ns_mov_b32 exec_hi, {mk:#x}")
            for i in range(4): a(f"v_cvt_pk_bf16_f32 v{dst+4*m+i}, v{src[2*i]}, v{src[2*i+1]}")
        a("s_mov_b64 exec, -1")
    masked_cvt(144, vals)
    a("v_mov_b32 v33, v4\nv_mov_b32 v35, v4\nv_mov_b32 v37, v4\nv_mov_b32 v39, v4\ns_waitcnt lgkmcnt(0)")
    for m in range(4):
        for u in range(4):
            t = 4 * u + m
            if t >= 14: continue
            cc = f"v[{128+4*u}:{131+4*u}]" if m else "0"
            a(f"v_mfma_f32_16x16x32_bf16 v[{128+4*u}:{131+4*u}], v[{144+4*m}:{147+4*m}], v[{64+4*t}:{67+4*t}], {cc}")
    pairup(128, 132, 32, 34, 40, 41)
    a("buffer_store_dwordx4 v[32:35], v11, s[52:55], s14 offen sc1")
    pairup(136, 140, 36, 38, 42, 43)
    a("""
    s_mov_b32 exec_hi, 0x55555555
    buffer_store_dwordx4 v[36:39], v11, s[52:55], s15 offen sc1
    """)
    stamp(10)
    a("s_branch L_done")

    a(f"""
    L_b1roles:
    s_cmp_lt_u32 s7, 7
    s_cbranch_scc0 L_fin
    """)
    srd(44, 32, 1792*896)
    a(f"""
    s_lshl_b32 s10, s89, 5
    s_lshl_b32 s13, s8, 3
    s_add_u32 s10, s10, s13
    s_mul_i32 s10, s10, 896
    s_mul_i32 s12, s13, {RSTR}
    s_add_u32 s12, s12, {L_W2}
    v_lshlrev_b32 v8, 4, v1
    s_mov_b32 exec_hi, 0x00ffffff
    """)
    for i in range(8):
        a(f"""
        s_mov_b32 m0, s12
        s_add_u32 s12, s12, {RSTR}
        buffer_load_dwordx4 v8, s[44:47], s10 offen{NT} lds
        s_add_u32 s10, s10, 896
        """)
    a(f"""
    s_mov_b32 exec_hi, -1
    v_mul_u32_u24 v9, 896, v13
    v_lshl_add_u32 v9, v2, 3, v9
    v_add_u32 v9, {L_XN}, v9
    v_and_b32 v11, 3, v3
    v_lshlrev_b32 v11, 3, v11
    v_lshl_add_u32 v10, v14, 6, v11
    v_mul_u32_u24 v12, {RSTR}, v14
    v_add_u32 v12, v12, v11
    s_mul_i32 s13, s8, 224
    s_add_u32 s13, s13, {L_W2}
    v_add_u32 v12, s13, v12
    s_mul_i32 s14, s8, {7*7168}
    s_lshl_b32 s13, s89, 7
    s_add_u32 s14, s14, s13
    s_add_u32 s14, s14, {WS_F}
    s_add_u32 s15, s14, {4*7168}
    v_mul_u32_u24 v11, 28, v13
    v_add_u32 v11, v11, v2
    v_mul_u32_u24 v11, 7168, v11
    v_and_b32 v15, 14, v3
    v_lshl_add_u32 v11, v15, 3, v11
    """)
    for r in range(144, 160): a(f"v_mov_b32 v{r}, 0")
    a("s_waitcnt vmcnt(9)\ns_barrier")
    stamp(8)
    def h_reads(s):
        b = 32 + 12 * (s % 4)
        a(f"ds_read2_b64 v[{b}:{b+3}], v9 offset0:{8*s} offset1:{8*s+4}")
        for t in range(2):
            a(f"ds_read_b64_tr_b16 v[{b+4+4*t}:{b+5+4*t}], v10 offset:{s*2048+32*t}")
            a(f"ds_read_b64_tr_b16 v[{b+6+4*t}:{b+7+4*t}], v10 offset:{s*2048+32*t+1024}")
    for s in range(3): h_reads(s)
    for s in range(14):
        left = min(2, 13 - s)
        a(f"s_waitcnt lgkmcnt({5*left})")
        b = 32 + 12 * (s % 4)
        for t in range(2):
            cc = f"v[{128+4*t}:{131+4*t}]" if s else "0"
            a(f"v_mfma_f32_16x16x32_bf16 v[{128+4*t}:{131+4*t}], v[{b+4+4*t}:{b+7+4*t}], v[{b}:{b+3}], {cc}")
        if s + 3 < 14: h_reads(s + 3)
    for i in range(4):
        a(f"v_lshlrev_b32 v{80+2*i}, 16, v{28+i}")
        a(f"v_and_b32 v{81+2*i}, 0xffff0000, v{28+i}")
    hp = [(128+2*i, 129+2*i) for i in range(4)]
    bfround(hp, 32)
    for i in range(8): a(f"v_add_f32 v{128+i}, v{128+i}, v{80+i}")
    bfround(hp, 32)
    for i in range(8): a(f"v_max_f32 v{128+i}, 0, v{128+i}")
    for i in range(8): a(f"v_mul_f32 v{128+i}, v{128+i}, v{128+i}")
    masked_cvt(144, list(range(128, 136)))
    a("v_mov_b32 v33, v4\nv_mov_b32 v35, v4\nv_mov_b32 v37, v4\nv_mov_b32 v39, v4")
    stamp(9)
    a("s_waitcnt vmcnt(0)\ns_barrier")
    for t in range(7):
        a(f"ds_read_b64_tr_b16 v[{64+4*t}:{65+4*t}], v12 offset:{32*t}")
        a(f"ds_read_b64_tr_b16 v[{66+4*t}:{67+4*t}], v12 offset:{32*t+16*RSTR}")
    for t in range(7):
        u, m = t >> 2, t & 3
        a(f"s_waitcnt lgkmcnt({12-2*t})")
        cc = f"v[{136+4*u}:{139+4*u}]" if m else "0"
        a(f"v_mfma_f32_16x16x32_bf16 v[{136+4*u}:{139+4*u}], v[{144+4*m}:{147+4*m}], v[{64+4*t}:{67+4*t}], {cc}")
    pairup(136, 137, 32, 34, 40, 41)
    a("buffer_store_dwordx4 v[32:35], v11, s[52:55], s14 offen sc1")
    pairup(140, 141, 36, 38, 42, 43)
    a("""
    s_mov_b32 exec_hi, 0x0000ffff
    buffer_store_dwordx4 v[36:39], v11, s[52:55], s15 offen sc1
    """)
    stamp(10)
    a("s_branch L_done")

    a(f"""
    L_fin:
    s_cmp_lt_u32 s7, 14
    s_cbranch_scc0 L_done
    s_sub_u32 s9, s89, 7
    s_cmp_ge_u32 s9, 28
    s_cselect_b32 s10, 28, 0
    s_cselect_b32 s11, 896, 0
    s_sub_u32 s10, s9, s10
    s_lshl_b32 s12, s10, 5
    s_lshl_b32 s13, s8, 3
    s_add_u32 s12, s12, s13
    v_and_b32 v8, 1, v1
    v_lshl_add_u32 v9, v8, 2, s12
    v_add_u32 v10, s11, v9
    global_load_dword v16, v10, s[16:17]
    global_load_dword v17, v9, s[34:35]
    global_load_dword v18, v10, s[36:37]
    v_lshrrev_b32 v11, 1, v1
    v_lshlrev_b32 v11, 7, v11
    v_lshl_add_u32 v11, v8, 4, v11
    s_lshl_b32 s13, s8, 5
    v_add_u32 v11, s13, v11
    s_lshl_b32 s12, s9, 14
    s_add_u32 s12, s12, {WS_S}
    s_add_u32 s13, s12, 4096
    s_add_u32 s14, s12, 8192
    s_add_u32 s15, s12, 12288
    s_mul_i32 s84, s9, 7168
    s_add_u32 s84, s84, {WS_F}
    s_add_u32 s85, s84, 4096
    v_mov_b32 v52, 0
    v_mov_b32 v53, v4
    v_mov_b32 v54, 0
    v_mov_b32 v55, v4
    L_fin_again:
    buffer_load_dwordx4 v[48:51], v11, s[52:55], s84 offen sc1
    s_mov_b32 exec_hi, 0x0000ffff
    buffer_load_dwordx4 v[52:55], v11, s[52:55], s85 offen sc1
    s_mov_b32 exec_hi, -1
    """)
    for u in range(4): a(f"buffer_load_dwordx4 v[{32+4*u}:{35+4*u}], v11, s[52:55], s{12+u} offen sc1")
    a("s_waitcnt vmcnt(0)")
    check_tags([33 + 2 * i for i in range(12)], "L_fin_ok", "L_fin_again", 42)
    a("L_fin_ok:")
    stamp(9)
    a("""
    v_add_f32 v32, v32, v36
    v_add_f32 v34, v34, v38
    v_add_f32 v40, v40, v44
    v_add_f32 v42, v42, v46
    v_add_f32 v48, v48, v52
    v_add_f32 v50, v50, v54
    v_add_f32 v32, v32, v40
    v_add_f32 v34, v34, v42
    """)
    allred_row("add", [32, 34, 48, 50], steps=(8, 4, 2))
    allred_x("add", [32, 34, 48, 50], [33, 35, 49, 51])
    a("""
    v_lshlrev_b32 v20, 16, v16
    v_and_b32 v21, 0xffff0000, v16
    v_lshlrev_b32 v22, 16, v17
    v_and_b32 v23, 0xffff0000, v17
    """)
    bfround([(32, 34), (48, 50)], 36)
    a("v_add_f32 v48, v48, v22\nv_add_f32 v50, v50, v23")
    bfround([(48, 50)], 36)
    nl = f2u(-LOG2E)
    a(f"""
    v_mul_f32 v40, {nl:#x}, v48
    v_mul_f32 v41, {nl:#x}, v50
    v_exp_f32 v40, v40
    v_exp_f32 v41, v41
    v_add_f32 v40, 1.0, v40
    v_add_f32 v41, 1.0, v41
    v_rcp_f32 v40, v40
    v_rcp_f32 v41, v41
    v_mul_f32 v48, v48, v40
    v_mul_f32 v50, v50, v41
    """)
    bfround([(48, 50)], 36)
    a("v_mul_f32 v32, v32, v48\nv_mul_f32 v34, v34, v50")
    bfround([(32, 34)], 36)
    a("""
    v_add_f32 v32, v32, v20
    v_add_f32 v34, v34, v21
    v_cvt_pk_bf16_f32 v32, v32, v34
    s_mov_b64 exec, 3
    global_store_dword v10, v32, s[36:37]
    s_add_u32 s13, s9, s8
    s_cmp_eq_u32 s13, 0
    s_cbranch_scc0 L_fin_end
    s_mov_b64 exec, 1
    buffer_store_dword v4, off, s[52:55], 0
    L_fin_end:
    """)
    stamp(10)
    a("L_done:")
    if dbgst:
        a("""
        s_memrealtime s[100:101]
        s_waitcnt lgkmcnt(0)
        s_mov_b64 exec, -1
        v_mov_b32 v6, 0
        s_not_b32 s84, s64
        v_writelane_b32 v6, s84, 0
        v_writelane_b32 v6, s64, 1
        v_writelane_b32 v6, s100, 13
        s_cmp_eq_u32 s3, 0
        s_cbranch_scc0 L_dbgA
        v_writelane_b32 v6, s70, 2
        v_writelane_b32 v6, s72, 3
        v_writelane_b32 v6, s76, 4
        s_branch L_dbgE
        L_dbgA:
        v_writelane_b32 v6, s70, 5
        v_writelane_b32 v6, s74, 6
        v_writelane_b32 v6, s76, 7
        v_writelane_b32 v6, s78, 8
        s_cmp_eq_u32 s6, 0
        s_cbranch_scc0 L_dbgB
        v_writelane_b32 v6, s82, 9
        v_writelane_b32 v6, s94, 10
        s_branch L_dbgE
        L_dbgB:
        s_cmp_lt_u32 s7, 7
        s_cbranch_scc0 L_dbgC
        v_writelane_b32 v6, s94, 11
        s_branch L_dbgE
        L_dbgC:
        s_cmp_lt_u32 s7, 14
        s_cbranch_scc0 L_dbgE
        v_writelane_b32 v6, s82, 12
        L_dbgE:
        s_mov_b32 s44, s38
        s_mov_b32 s45, s39
        s_mov_b32 s46, 256
        s_mov_b32 s47, 0x20000
        v_lshlrev_b32 v7, 2, v1
        s_mov_b64 exec, 0xffff
        buffer_atomic_umax v6, v7, s[44:47], 0 offen sc1
        s_waitcnt vmcnt(0)
        """)
    elif stamps:
        a(f"""
        s_memrealtime s[100:101]
        s_mov_b32 s84, s42
        s_getreg_b32 s85, hwreg(HW_REG_XCC_ID)
        s_waitcnt lgkmcnt(0)
        s_lshl_b32 s13, s2, 4
        s_add_u32 s13, s13, s3
        s_lshl_b32 s13, s13, 8
        s_add_u32 s13, s13, {STAMP_OFF}
        v_mov_b32 v3, 0
        s_mov_b64 exec, 1
        """)
        for i in range(13):
            lo = 64 + 2 * i if i < 10 else {10: 94, 11: 100, 12: 84}[i]
            a(f"v_mov_b32 v6, s{lo}\nv_mov_b32 v7, s{lo+1}")
            a(f"buffer_store_dwordx2 v[6:7], v3, s[52:55], s13 offen offset:{8*i}")
            a("s_nop 1")
        a("s_waitcnt vmcnt(0)")
    a("L_end:\ns_endpgm\nL_codeend:")
    lines, n = hazard.fix(a.l)
    hdr = open("cdna_kernels/" + NAME + ".s.ref").read().split("; Override")[0] if False else ""
    return header(256, 320, LDS_BYTES) + "\n".join(lines) + "\n" + footer(160)

if __name__ == "__main__":
    kw = json.loads(sys.argv[2]) if len(sys.argv) > 2 else {}
    open(sys.argv[1], "w").write(gen(**kw))
```
